```python
import torch

def _softmax(x, axis=-1):
    return torch.softmax(x, dim=axis)
def _gelu(x):
    return torch.nn.functional.gelu(x, approximate="tanh")
def _silu(x):
    return torch.nn.functional.silu(x)
def _sigmoid(x):
    return torch.sigmoid(x)
def _layernorm(x, axis=-1, eps=1e-5):
    m = x.mean(dim=axis, keepdim=True)
    v = x.var(dim=axis, keepdim=True, unbiased=False)
    return (x - m) / torch.sqrt(v + eps)
def _scatter_add(tgt, idx, src, axis=0):
    return tgt.clone().index_add_(axis, idx, src)
def _segment_sum(src, seg, n):
    out = torch.zeros((n,) + src.shape[1:], dtype=src.dtype)
    return out.index_add_(0, seg, src)
def _pad(x, pw):
    flat = tuple(v for pair in reversed(pw) for v in pair)
    return torch.nn.functional.pad(x, flat)

kernel_name = 'sequential_preLN__ssm_conv_h3__mixer_s_mlp__prompt'

def setup_inputs():

    _w = (lambda a: (lambda t: t.to(torch.bfloat16) if t.is_floating_point() else t)(torch.as_tensor(a)))
    def _A_setup():
        B, S, D = 1, 2048, 576
        ks = 4
        return {
            "q": _w((lambda *s: torch.randn(*s, dtype=torch.bfloat16) * 0.05)(B, S, D)),
            "k": _w((lambda *s: torch.randn(*s, dtype=torch.bfloat16) * 0.4)(B, S, D)),
            "v": _w((lambda *s: torch.randn(*s, dtype=torch.bfloat16) * 0.4)(B, S, D)),
            "shift_k": _w((lambda *s: torch.randn(*s, dtype=torch.bfloat16) * 0.4)(D, ks) * 0.5),
            "ssm_k": _w((lambda *s: torch.randn(*s, dtype=torch.bfloat16) * 0.4)(D, S) * (1.0 / S ** 0.5)),
            "ssm_D": _w((lambda *s: torch.randn(*s, dtype=torch.bfloat16) * 0.4)(D)),
        }
    _A_in = _A_setup()

    def _B_setup():
        B, S, D, F = 1, 2048, 576, 4608
        return {
            "x":  _w((lambda *s: torch.randn(*s, dtype=torch.bfloat16) * 0.05)(B, S, D)),
            "w1": _w((lambda *s: torch.randn(*s, dtype=torch.bfloat16) * 3.2)(D, D) * (D ** -0.5)),
            "w2": _w((lambda *s: torch.randn(*s, dtype=torch.bfloat16) * 3.2)(D, D) * (D ** -0.5)),
            "w3": _w((lambda *s: torch.randn(*s, dtype=torch.bfloat16) * 3.2)(D, F) * (D ** -0.5)),
            "w4": _w((lambda *s: torch.randn(*s, dtype=torch.bfloat16) * 1.6)(F, D) * (F ** -0.5)),
        }
    _B_in = _B_setup()

    return {
        "A_q": _A_in["q"],
        "A_k": _A_in["k"],
        "A_v": _A_in["v"],
        "A_shift_k": _A_in["shift_k"],
        "A_ssm_k": _A_in["ssm_k"],
        "A_ssm_D": _A_in["ssm_D"],
        "B_x": _B_in["x"],
        "B_w1": _B_in["w1"],
        "B_w2": _B_in["w2"],
        "B_w3": _B_in["w3"],
        "B_w4": _B_in["w4"],
    }

def reference(A_q, A_k, A_v, A_shift_k, A_ssm_k, A_ssm_D, B_x, B_w1, B_w2, B_w3, B_w4):
    def _A_ref(q, k, v, shift_k, ssm_k, ssm_D):
        B, S, D = q.shape
        ks = shift_k.shape[-1]
        k_pad = _pad(k, ((0, 0), (ks - 1, 0), (0, 0)))
        k_shift = torch.zeros_like(k)
        for t in range(ks):
            k_shift = k_shift + k_pad[:, t:t + S, :] * shift_k[:, ks - 1 - t][None, None, :]
        kv = k_shift * v
        L = 2 * S
        kv_pad = _pad(kv, ((0, 0), (0, S), (0, 0)))
        kf_pad = _pad(ssm_k, ((0, 0), (0, S)))
        kv_f = (lambda x, axes=(-2,-1): torch.fft.rfft2(x.float(), dim=axes))(kv_pad[:, None, :, :], axes=(1, 2))
        kf_f = (lambda x, axes=(-2,-1): torch.fft.rfft2(x.float(), dim=axes))(kf_pad[:, None, :], axes=(1, 2))
        kf_f = (lambda x, *d: x.permute(*d))(kf_f, 1, 2, 0)
        y_f = kv_f * kf_f[None, :, :, :]
        y = (lambda x, s, axes=(-2,-1): torch.fft.irfft2(x, s=s, dim=axes).to(torch.bfloat16))(y_f, (1, L), axes=(1, 2))[:, 0, :S, :]
        y = y + kv * ssm_D[None, None, :]
        return q * y

    def _B_ref(x, w1, w2, w3, w4):
        B, S, D = x.shape
        h = _gelu(_layernorm(x, axis=-1) @ w1)
        c = D // 4
        g0 = _pad(h[:, :, 0*c:1*c], ((0, 0), (1, 0), (0, 0)))[:, :S, :]
        g1 = _pad(h[:, :, 1*c:2*c], ((0, 0), (0, 1), (0, 0)))[:, 1:, :]
        g2 = _pad(h[:, :, 2*c:3*c], ((0, 0), (2, 0), (0, 0)))[:, :S, :]
        g3 = _pad(h[:, :, 3*c:   ], ((0, 0), (0, 2), (0, 0)))[:, 2:, :]
        hs = torch.concatenate([g0, g1, g2, g3], axis=-1) @ w2
        x1 = x + hs
        h2 = _gelu(_layernorm(x1, axis=-1) @ w3) @ w4
        return x1 + h2

    x = A_q
    h = x + _A_ref(_layernorm(x, axis=-1), A_k, A_v, A_shift_k, A_ssm_k, A_ssm_D)
    h2 = h + _B_ref(_layernorm(h, axis=-1), B_w1, B_w2, B_w3, B_w4)
    return h2
```

```python
S, D, F = 2048, 576, 4608
SLAB = 32 * 576 * 2
CHUNK = 18 * SLAB
WS_W1F = 0
WS_W2F = CHUNK
WS_W3F = 2 * CHUNK
WS_W4F = 10 * CHUNK
ACT = S * D * 2
WS_Y2 = 18 * CHUNK
Y2_T = 144 * 128
WS_G = WS_Y2 + ACT
WS_X1 = WS_G + ACT
WS_H = WS_X1 + ACT
WS_ST = WS_H + ACT
WS_P = WS_ST + 65536
WS_FLAG = WS_P + 8 * ACT
WS_STAMP = WS_FLAG + 65536
WS_ST2 = WS_STAMP + (2 << 20)
import os
STAMPS = os.environ.get("STAMPS", "0") == "1"
NAME = "sequential_preLN__ssm_conv_h3__mixer_s_mlp__prompt"


def kd(name, vgpr, sgpr, accum):
    return f""".amdhsa_kernel {name}
  .amdhsa_next_free_vgpr {vgpr}
  .amdhsa_next_free_sgpr {sgpr}
  .amdhsa_accum_offset {accum}
  .amdhsa_group_segment_fixed_size 0
  .amdhsa_kernarg_size 112
  .amdhsa_user_sgpr_count 2
  .amdhsa_user_sgpr_kernarg_segment_ptr 1
  .amdhsa_system_sgpr_workgroup_id_x 1
.end_amdhsa_kernel
"""
```

```python
import re
import copy

_REG = re.compile(r"(?<![\w.])([vas])(?:(\d+)|\[(\d+):(\d+)\])(?![\w])")


def regs_of(tok):
    out = set()
    for m in _REG.finditer(tok):
        f = m.group(1)
        if m.group(2) is not None:
            out.add(f + m.group(2))
        else:
            for i in range(int(m.group(3)), int(m.group(4)) + 1):
                out.add(f + str(i))
    if re.search(r"\bvcc\b", tok):
        out.add("vcc")
    if re.search(r"\bexec\b", tok):
        out.add("exec")
    if re.search(r"\bm0\b", tok):
        out.add("m0")
    return out


def split_ops(s):
    ops, depth, cur = [], 0, ""
    for ch in s:
        if ch in "[(":
            depth += 1
        if ch in "])":
            depth -= 1
        if ch == "," and depth == 0:
            ops.append(cur.strip())
            cur = ""
        else:
            cur += ch
    if cur.strip():
        ops.append(cur.strip())
    return ops


TRANS = ("v_exp_f32", "v_log_f32", "v_rcp_f32", "v_rsq_f32", "v_sqrt_f32", "v_sin_f32", "v_cos_f32")


def vr(base, n=1):
    return f"v{base}" if n == 1 else f"v[{base}:{base + n - 1}]"


def ar(base, n=1):
    return f"a{base}" if n == 1 else f"a[{base}:{base + n - 1}]"


def sr(base, n=1):
    return f"s{base}" if n == 1 else f"s[{base}:{base + n - 1}]"


class Ins:
    __slots__ = ("text", "op", "dst", "src", "kind", "slots", "srcC", "srcAB", "passes", "dpp", "wide_store")

    def __init__(self, text):
        self.text = text
        self.slots = 1
        self.srcC = set()
        self.srcAB = set()
        self.passes = 0
        self.dpp = False
        self.wide_store = False
        t = text.split(";")[0].strip()
        parts = t.split(None, 1)
        self.op = op = parts[0]
        rest = parts[1] if len(parts) > 1 else ""
        ops = split_ops(rest)
        R = [regs_of(o) for o in ops]
        allr = set().union(*R) if R else set()
        dst, src = set(), set()
        kind = "other"
        if op.startswith("v_mfma"):
            kind = "mfma"
            dst = R[0]
            self.srcAB = R[1] | R[2]
            self.srcC = R[3]
            src = self.srcAB | self.srcC
            self.passes = 8 if "32x32" in op else 4
        elif op.startswith("buffer_load") or op.startswith("global_load"):
            if re.search(r"\blds\b", rest) or "_lds_" in op:
                kind = "vmem_lds"
                src = allr | {"m0"}
            else:
                kind = "vmem_ld"
                dst = R[0]
                src = set().union(*R[1:])
        elif op.startswith("buffer_store") or op.startswith("global_store"):
            kind = "vmem_st"
            src = allr
            self.wide_store = op.endswith("x4") or op.endswith("x3")
        elif "atomic" in op and (op.startswith("buffer") or op.startswith("global")):
            if re.search(r"\bsc0\b", rest):
                kind = "vmem_ld"
                dst = R[0]
                src = allr
            else:
                kind = "vmem_st"
                src = allr
        elif op in ("buffer_inv", "buffer_wbl2"):
            kind = "vmem_st"
        elif op.startswith("ds_read") or op.startswith("ds_bpermute") or op.startswith("ds_swizzle") or op.startswith("ds_permute"):
            kind = "ds_ld"
            dst = R[0]
            src = set().union(*R[1:])
        elif op.startswith("ds_add_rtn"):
            kind = "ds_ld"
            dst = R[0]
            src = set().union(*R[1:])
        elif op.startswith("ds_"):
            kind = "ds_st"
            src = allr
        elif op.startswith("s_load") or op.startswith("s_memtime") or op.startswith("s_memrealtime") or op.startswith("s_buffer_load"):
            kind = "smem"
            dst = R[0]
            src = set().union(*R[1:]) if len(R) > 1 else set()
        elif op == "s_nop":
            kind = "nop"
            self.slots = int(rest, 0) + 1
        elif op.startswith("s_"):
            kind = "salu"
            if op.startswith("s_cmp") or op.startswith("s_cbranch") or op.startswith("s_branch") or op in (
                "s_waitcnt", "s_barrier", "s_endpgm", "s_sleep", "s_setprio", "s_bitcmp1_b32", "s_bitcmp0_b32"):
                src = allr
            else:
                dst = R[0]
                src = set().union(*R[1:]) if len(R) > 1 else set()
                if "saveexec" in op:
                    dst = dst | {"exec"}
                    src = src | {"exec"}
        elif op.startswith("v_"):
            kind = "valu"
            if op.split("_e")[0] in TRANS or op in TRANS:
                kind = "trans"
            self.dpp = "_dpp" in op or "quad_perm" in rest or "row_" in rest or "wave_" in rest
            if op.startswith("v_permlane"):
                dst = R[0] | R[1]
                src = R[0] | R[1]
            elif op.startswith("v_cmpx"):
                dst = R[0] | {"exec"}
                src = set().union(*R[1:])
            elif op.startswith("v_add_co") or op.startswith("v_sub_co") or op.startswith("v_addc_co") or op.startswith("v_subb_co"):
                dst = R[0] | R[1]
                src = set().union(*R[2:])
            else:
                dst = R[0]
                src = set().union(*R[1:]) if len(R) > 1 else set()
                if op.startswith("v_fmac") or op.startswith("v_dot2c") or op.startswith("v_writelane") or self.dpp:
                    src = src | R[0]
        self.kind = kind
        self.dst = dst
        self.src = src


class Kern:
    def __init__(self):
        self.out = []
        self.hist = []
        self.vmq = []
        self.lgq = []
        self.auto = True
        self.ninst = 0

    def save(self):
        return (copy.copy(self.hist), copy.deepcopy(self.vmq), copy.deepcopy(self.lgq))

    def restore(self, st):
        self.hist, self.vmq, self.lgq = copy.copy(st[0]), copy.deepcopy(st[1]), copy.deepcopy(st[2])

    def raw(self, text):
        self.out.append(text)

    def label(self, name):
        self.out.append(f"{name}:")

    def c(self, text):
        self.out.append(f"    ; {text}")

    def _push(self, ins):
        self.out.append("    " + ins.text)
        self.hist.append(ins)
        self.ninst += 1
        if len(self.hist) > 40:
            self.hist = self.hist[-40:]

    def wait(self, vm=None, lg=None):
        parts = []
        if vm is not None:
            vm = min(vm, 63)
            if len(self.vmq) > vm:
                self.vmq = self.vmq[len(self.vmq) - vm:] if vm else []
            parts.append(f"vmcnt({vm})")
        if lg is not None:
            lg = min(lg, 15)
            if len(self.lgq) > lg:
                self.lgq = self.lgq[len(self.lgq) - lg:] if lg else []
            parts.append(f"lgkmcnt({lg})")
        self._push(Ins("s_waitcnt " + " ".join(parts)))

    def _auto_wait(self, ins):
        touched = ins.src | ins.dst
        vm = lg = None
        for i in range(len(self.vmq) - 1, -1, -1):
            if self.vmq[i] & touched:
                vm = len(self.vmq) - 1 - i
                break
        for i in range(len(self.lgq) - 1, -1, -1):
            if self.lgq[i][0] & touched:
                lg = len(self.lgq) - 1 - i
                if any(s for _, s in self.lgq):
                    lg = 0
                break
        if vm is not None or lg is not None:
            self.wait(vm, lg)

    def _need(self, ins):
        need = 0
        dist = 0
        vsrc = {r for r in ins.src if r[0] in "va" and r not in ("vcc",)}
        for p in reversed(self.hist):
            req = 0
            isv = p.kind in ("valu", "trans")
            pv = {r for r in p.dst if r[0] in "va" and r != "vcc"}
            ps = {r for r in p.dst if r[0] == "s" or r == "vcc"}
            if isv:
                if ins.kind == "mfma" and (pv & ins.src):
                    req = max(req, 2)
                if ins.kind in ("valu", "trans"):
                    if ins.dpp and (pv & ins.src):
                        req = max(req, 2)
                    if ins.op.startswith("v_permlane") and (pv & ins.src):
                        req = max(req, 2)
                    if (ins.op.startswith("v_readfirstlane") or ins.op.startswith("v_readlane")) and (pv & ins.src):
                        req = max(req, 1)
                    if ps & ins.src:
                        req = max(req, 4 if (ins.op.startswith("v_readlane") or ins.op.startswith("v_writelane")) else 2)
                    if "exec" in p.dst:
                        req = max(req, 5 if ins.dpp else 4)
                if ins.kind in ("vmem_ld", "vmem_st", "vmem_lds") and (ps & ins.src):
                    req = max(req, 5)
                if ins.kind == "mfma" and "exec" in p.dst:
                    req = max(req, 4)
                if p.op.startswith("v_dot") and ins.op != p.op and (pv & (ins.src | ins.dst)):
                    req = max(req, 3)
                if p.kind == "trans" and ins.kind in ("valu", "mfma") and (pv & ins.src):
                    req = max(req, 1)
                if p.kind == "trans" and ins.kind in ("vmem_st", "ds_st", "vmem_ld", "ds_ld") and (pv & ins.src):
                    req = max(req, 1)
            if p.kind == "mfma":
                big = 8 if p.passes == 4 else 12
                if ins.kind == "mfma":
                    if p.dst & ins.srcAB:
                        req = max(req, big)
                    if p.dst & ins.srcC:
                        if not (p.dst == ins.srcC and p.op == ins.op):
                            req = max(req, big - 2)
                    elif p.dst & ins.dst:
                        req = max(req, big)
                else:
                    if p.dst & (ins.src | ins.dst):
                        req = max(req, big)
                    if ins.kind in ("valu", "trans") and (p.srcC & ins.dst):
                        req = max(req, 3 if p.passes == 4 else 7)
            if p.kind == "salu" and "m0" in p.dst and (ins.kind == "vmem_lds" or "m0" in ins.src):
                req = max(req, 1)
            if p.wide_store and (p.src & ins.dst):
                req = max(req, 2)
            if req > dist:
                need = max(need, req - dist)
            dist += p.slots
            if dist > 24:
                break
        return need

    def i(self, text):
        ins = Ins(text)
        if self.auto:
            self._auto_wait(ins)
        if ins.kind in ("ds_ld", "ds_st", "smem") and len(self.lgq) >= 15:
            self.wait(lg=0 if any(s for _, s in self.lgq) else 14)
        if ins.kind in ("vmem_ld", "vmem_st", "vmem_lds") and len(self.vmq) >= 63:
            self.wait(vm=62)
        n = self._need(ins)
        while n > 0:
            k = min(n, 16)
            self._push(Ins(f"s_nop {k - 1}"))
            n -= k
        self._push(ins)
        if ins.kind in ("vmem_ld", "vmem_st", "vmem_lds"):
            self.vmq.append(set(ins.dst))
        elif ins.kind in ("ds_ld", "ds_st"):
            self.lgq.append((set(ins.dst), False))
        elif ins.kind == "smem":
            self.lgq.append((set(ins.dst), True))
        return ins

    def stamp(self, idx):
        if not getattr(self, "stamps", False):
            return
        import os
        op = "s_memtime" if os.environ.get("CYC") == "1" else "s_memrealtime"
        self.i(f"{op} s[{80+2*idx}:{81+2*idx}]")
        self.nst = max(getattr(self, "nst", 0), idx + 1)

    def stamp_flush(self, kid, wsoff, srd="s[44:47]"):
        if not getattr(self, "stamps", False):
            return
        self.wait(lg=0)
        self.i("s_lshl_b32 s78, s2, 3")
        self.i("s_add_u32 s78, s78, s3")
        self.i("s_lshl_b32 s78, s78, 5")
        self.i(f"s_add_u32 s78, s78, {wsoff + kid * 1024 * 8 * 32}")
        self.i("s_mov_b64 exec, 1")
        self.i("v_mov_b32 v1, 0")
        for i in range(8):
            self.i(f"v_mov_b32 v0, s{80+2*i}")
            self.i(f"buffer_store_dword v0, v1, {srd}, s78 offen offset:{4*i}")

    def text(self):
        return "\n".join(self.out)
```

```python
import struct, os
from dsl import *
from common import *

RS = 1184
GELU_C0 = 2.0 * 0.7978845608028654 * 1.4426950408889634
GELU_C1 = GELU_C0 * 0.044715


def f32(x):
    return "0x%08x" % struct.unpack("<I", struct.pack("<f", x))[0]


def prologue(k, name, nwg):
    k.stamps = STAMPS
    k.raw(f".globl {name}\n.p2align 8\n.type {name},@function\n{name}:")
    k.i(f"s_cmp_ge_u32 s2, {nwg}")
    k.i(f"s_cbranch_scc1 {name}_end")
    k.stamp(0)
    k.i("s_load_dwordx2 s[16:17], s[0:1], 0")
    k.i("s_load_dwordx2 s[38:39], s[0:1], 88")
    k.i("s_load_dwordx2 s[42:43], s[0:1], 104")
    k.i("v_lshrrev_b32 v1, 6, v0")
    k.i("v_and_b32 v2, 63, v0")
    k.i("v_readfirstlane_b32 s3, v1")
    k.i("s_lshr_b32 s4, s2, 3")
    k.i("s_and_b32 s5, s2, 7")


def srd(k, b, ptr, off, size):
    if off:
        k.i(f"s_add_u32 s{b}, s{ptr}, {off}")
        k.i(f"s_addc_u32 s{b+1}, s{ptr+1}, 0")
        k.i(f"s_and_b32 s{b+1}, s{b+1}, 0xffff")
    else:
        k.i(f"s_mov_b32 s{b}, s{ptr}")
        k.i(f"s_and_b32 s{b+1}, s{ptr+1}, 0xffff")
    k.i(f"s_mov_b32 s{b+2}, {size}")
    k.i(f"s_mov_b32 s{b+3}, 0x20000")


def gelu_ops(xs, tmps, vc1, sc0):
    ops = []
    if os.environ.get("K4_NOGELU"):
        return [f"v_mov_b32 v{t}, v{x}" for x, t in zip(xs, tmps)]
    for x, t in zip(xs, tmps):
        ops.append(f"v_mul_f32 v{t}, v{x}, v{x}")
    for x, t in zip(xs, tmps):
        ops.append(f"v_fma_f32 v{t}, v{t}, v{vc1}, s{sc0}")
    for x, t in zip(xs, tmps):
        ops.append(f"v_mul_f32 v{t}, v{t}, v{x}")
    for x, t in zip(xs, tmps):
        ops.append(f"v_exp_f32 v{t}, v{t}")
    for x, t in zip(xs, tmps):
        ops.append(f"v_add_f32 v{t}, 1.0, v{t}")
    for x, t in zip(xs, tmps):
        ops.append(f"v_rcp_f32 v{t}, v{t}")
    for x, t in zip(xs, tmps):
        ops.append(f"v_mul_f32 v{t}, v{t}, v{x}")
    return ops


def reduce16_stride4(k, regs, tmps):
    for ctl in ("row_ror:4", "row_ror:8"):
        for r in regs:
            k.i(f"v_add_f32_dpp v{r}, v{r}, v{r} {ctl} row_mask:0xf bank_mask:0xf")
    for op in ("v_permlane16_swap_b32", "v_permlane32_swap_b32"):
        for r, t in zip(regs, tmps):
            k.i(f"v_mov_b32 v{t}, v{r}")
        for r, t in zip(regs, tmps):
            k.i(f"{op} v{r}, v{t}")
        for r, t in zip(regs, tmps):
            k.i(f"v_add_f32 v{r}, v{r}, v{t}")


def reduce8(k, regs):
    for ctl in ("quad_perm:[1,0,3,2]", "quad_perm:[2,3,0,1]", "row_half_mirror"):
        for r in regs:
            k.i(f"v_add_f32_dpp v{r}, v{r}, v{r} {ctl} row_mask:0xf bank_mask:0xf")


def ln_finish(k, vs, vq, vmean, vrstd, vt, seps, sinv):
    k.i(f"v_mul_f32 v{vmean}, s{sinv}, v{vs}")
    k.i(f"v_mul_f32 v{vq}, s{sinv}, v{vq}")
    k.i(f"v_fma_f32 v{vq}, -v{vmean}, v{vmean}, v{vq}")
    k.i(f"v_max_f32 v{vq}, 0, v{vq}")
    k.i(f"v_add_f32 v{vq}, s{seps}, v{vq}")
    k.i(f"v_rsq_f32 v{vrstd}, v{vq}")
    k.i(f"v_mul_f32 v{vt}, v{vmean}, v{vrstd}")
    k.i(f"v_sub_f32 v{vt}, 0, v{vt}")


def coop_prefetch(k):
    k.i("s_cmp_ge_u32 s3, 6")
    k.i("s_cbranch_scc1 1f")
    k.i("s_cmp_ge_u32 s3, 3")
    k.i(f"s_cselect_b32 s20, {WS_W4F - WS_W3F}, 0")
    k.i("s_cselect_b32 s21, 3, 0")
    k.i(f"s_add_u32 s20, s20, {WS_W3F}")
    k.i("s_sub_u32 s21, s3, s21")
    k.i("s_mul_i32 s21, s21, 54")
    k.i("s_mul_i32 s22, s4, 162")
    k.i("s_add_u32 s21, s21, s22")
    k.i("s_lshl_b32 s21, s21, 7")
    k.i("s_add_u32 s20, s20, s21")
    k.i(f"s_mul_i32 s21, s5, {CHUNK}")
    k.i("s_add_u32 s20, s20, s21")
    k.i("v_lshlrev_b32 v12, 7, v2")
    k.i("s_mov_b32 s22, -1")
    k.i("s_mov_b32 s23, 0x3fffff")
    k.i("s_branch 2f")
    k.label("1")
    k.i("s_cmp_eq_u32 s3, 7")
    k.i(f"s_cselect_b32 s20, {WS_W2F}, {WS_W1F}")
    k.i("s_and_b32 s21, s5, 3")
    k.i(f"s_mul_i32 s21, s21, {9*1024}")
    k.i("s_add_u32 s20, s20, s21")
    k.i("s_mul_i32 s21, s4, 41")
    k.i("v_add_u32 v12, s21, v2")
    k.i("v_min_u32 v12, 1295, v12")
    k.i("s_mov_b32 s21, 0x38e38e4")
    k.i("v_mul_hi_u32 v13, v12, s21")
    k.i(f"v_mul_u32_u24 v14, {SLAB - 72*128}, v13")
    k.i("v_lshl_add_u32 v12, v12, 7, v14")
    k.i("s_mov_b32 s22, -1")
    k.i("s_mov_b32 s23, 0x1ff")
    k.label("2")
    k.i("s_mov_b64 exec, s[22:23]")
    k.i("buffer_load_dword v13, v12, s[44:47], s20 offen")
    k.i("s_mov_b64 exec, -1")


def small_gemm_wloads(k, wsoff, stile, two):
    k.i(f"s_lshl_b32 s20, s{stile}, 10")
    k.i(f"s_add_u32 s20, s20, {wsoff}")
    for ks in range(18):
        k.i(f"buffer_load_dwordx4 {ar(4*ks,4)}, v3, s[44:47], s20 offen")
        if two:
            k.i(f"buffer_load_dwordx4 {ar(72+4*ks,4)}, v4, s[44:47], s20 offen")
        if ks < 17:
            k.i(f"s_add_u32 s20, s20, {SLAB}")


def small_gemm(k, two, act_read, ACC, AF):
    ntile = 2 if two else 1
    for i in range(8 * ntile):
        k.i(f"v_mov_b32 v{ACC+i}, 0")
    NB = 4
    for ks in range(NB - 1):
        for rt in range(2):
            act_read(AF + 8*(ks % NB) + 4*rt, rt, ks)
    for ks in range(18):
        if ks + NB - 1 < 18:
            for rt in range(2):
                act_read(AF + 8*((ks+NB-1) % NB) + 4*rt, rt, ks + NB - 1)
        for t in range(ntile):
            for rt in range(2):
                a = ACC + 8*t + 4*rt
                k.i(f"v_mfma_f32_16x16x32_bf16 {vr(a,4)}, {ar(72*t+4*ks,4)}, {vr(AF+8*(ks%NB)+4*rt,4)}, {vr(a,4)}")


def gen_k2(name):
    k = Kern()
    prologue(k, name, 256)
    k.i("s_lshr_b32 s6, s5, 2")
    k.i("s_and_b32 s7, s5, 3")
    k.i("s_lshl_b32 s8, s4, 6")
    k.i("s_lshl_b32 s9, s6, 5")
    k.i("s_add_u32 s8, s8, s9")
    k.i("s_lshr_b32 s9, s7, 1")
    k.i("s_add_u32 s9, s9, 1")
    k.i("s_sub_u32 s10, 0, s9")
    k.i("s_bitcmp1_b32 s7, 0")
    k.i("s_cselect_b32 s9, s9, s10")
    k.i("s_add_u32 s10, s8, s9")
    k.i("s_lshl_b32 s11, s3, 2")
    k.i("s_add_u32 s11, s11, s10")
    k.i("v_and_b32 v5, 3, v2")
    k.i("v_lshrrev_b32 v6, 2, v2")
    k.i("v_add_u32 v7, s11, v5")
    k.i("s_movk_i32 s12, 1152")
    k.i("v_mul_lo_u32 v8, v7, s12")
    k.i("v_lshl_add_u32 v8, v6, 3, v8")
    k.i("v_ashrrev_i32 v9, 5, v7")
    k.i(f"s_mov_b32 s12, {Y2_RB}")
    k.i("v_mul_lo_u32 v9, v9, s12")
    k.i("v_and_b32 v10, 31, v7")
    k.i("v_lshl_add_u32 v9, v10, 3, v9")
    k.i("v_lshl_add_u32 v9, v6, 8, v9")
    k.i("v_lshlrev_b32 v3, 4, v2")
    k.i("v_add_u32 v4, 0x2000, v3")
    k.wait(lg=0)
    srd(k, 48, 16, 0, ACT)
    srd(k, 52, 42, WS_Y2, ACT)
    srd(k, 44, 42, 0, 0x10000000)
    srd(k, 56, 42, WS_ST, S * 16)
    XR, YR = 16, 34
    for i in range(9):
        k.i(f"buffer_load_dwordx2 {vr(XR+2*i,2)}, v8, s[48:51], 0 offen offset:{128*i}")
    k.i("s_mov_b32 s13, 0")
    for i in range(9):
        k.i(f"buffer_load_dwordx2 {vr(YR+2*i,2)}, v9, s[52:55], s13 offen")
        if i < 8:
            k.i("s_add_u32 s13, s13, 4096")
    coop_prefetch(k)
    k.i("s_mul_i32 s14, s7, 9")
    k.i("s_add_u32 s14, s14, s3")
    k.i(f"s_mov_b32 s60, {f32(1.0/576)}")
    k.i(f"s_mov_b32 s61, {f32(1e-5)}")
    k.i(f"s_mov_b32 s62, {f32(-GELU_C0)}")
    k.i(f"v_mov_b32 v11, {f32(-GELU_C1)}")
    k.i("s_mov_b32 s63, 0x3f803f80")
    k.i("s_cmp_lg_u32 s3, 0")
    k.i(f"s_cbranch_scc1 {name}_one")
    st = k.save()
    k2_body(k, True)
    k.stamp(7)
    k.stamp_flush(1, WS_STAMP)
    k.i("s_endpgm")
    k.restore(st)
    k.label(f"{name}_one")
    k2_body(k, False)
    k.stamp(7)
    k.stamp_flush(1, WS_STAMP)
    k.label(f"{name}_end")
    k.i("s_endpgm")
    return k


def k2_body(k, two):
    XR, YR = 16, 34
    X = 52
    T = 88
    vs, vq, vt, t0, vm1, vr1, vm2, vr2, t1, vm3, vr3 = 96, 97, 98, 99, 100, 101, 102, 103, 104, 105, 106
    k.stamp(1)
    k.i(f"v_mov_b32 v{vs}, 0")
    k.i(f"v_mov_b32 v{vq}, 0")
    for i in range(18):
        k.i(f"v_dot2c_f32_bf16 v{vs}, s63, v{XR+i}")
        k.i(f"v_dot2c_f32_bf16 v{vq}, v{XR+i}, v{XR+i}")
    for i in range(18):
        k.i(f"v_lshlrev_b32 v{X+2*i}, 16, v{XR+i}")
        k.i(f"v_and_b32 v{X+2*i+1}, 0xffff0000, v{XR+i}")
    k.stamp(2)
    small_gemm_wloads(k, WS_W1F, 14, two)
    reduce16_stride4(k, [vs, vq], [t0, t1])
    ln_finish(k, vs, vq, vm1, vr1, vt, 61, 60)
    k.i(f"v_mov_b32 v{vs}, 0")
    k.i(f"v_mov_b32 v{vq}, 0")
    for i in range(9):
        for h in range(2):
            k.i(f"v_lshlrev_b32 v{T+2*h}, 16, v{YR+2*i+h}")
            k.i(f"v_and_b32 v{T+2*h+1}, 0xffff0000, v{YR+2*i+h}")
        for e in range(4):
            k.i(f"v_fma_f32 v{T+4+e}, v{X+4*i+e}, v{vr1}, v{vt}")
        for e in range(4):
            k.i(f"v_fma_f32 v{X+4*i+e}, v{T+4+e}, v{T+e}, v{X+4*i+e}")
        for e in range(4):
            k.i(f"v_add_f32 v{vs}, v{vs}, v{X+4*i+e}")
            k.i(f"v_fmac_f32 v{vq}, v{X+4*i+e}, v{X+4*i+e}")
    reduce16_stride4(k, [vs, vq], [t0, t1])
    ln_finish(k, vs, vq, vm2, vr2, vt, 61, 60)
    k.i("v_lshlrev_b32 v13, 4, v7")
    k.i("s_mov_b64 exec, 15")
    k.i(f"buffer_store_dwordx4 {vr(vm1,4)}, v13, s[56:59], 0 offen")
    k.i("s_mov_b64 exec, -1")
    k.i(f"v_mov_b32 v{vs}, 0")
    k.i(f"v_mov_b32 v{vq}, 0")
    for i in range(36):
        k.i(f"v_fma_f32 v{X+i}, v{X+i}, v{vr2}, v{vt}")
    for i in range(36):
        k.i(f"v_add_f32 v{vs}, v{vs}, v{X+i}")
        k.i(f"v_fmac_f32 v{vq}, v{X+i}, v{X+i}")
    reduce16_stride4(k, [vs, vq], [t0, t1])
    ln_finish(k, vs, vq, vm3, vr3, vt, 61, 60)
    k.i("s_lshl_b32 s15, s3, 2")
    k.i("v_add_u32 v13, s15, v5")
    k.i(f"v_mul_u32_u24 v13, {RS}, v13")
    k.i("v_lshl_add_u32 v13, v6, 3, v13")
    for i in range(9):
        for e in range(4):
            k.i(f"v_fma_f32 v{X+4*i+e}, v{X+4*i+e}, v{vr3}, v{vt}")
        k.i(f"v_cvt_pk_bf16_f32 v{XR+2*i}, v{X+4*i}, v{X+4*i+1}")
        k.i(f"v_cvt_pk_bf16_f32 v{XR+2*i+1}, v{X+4*i+2}, v{X+4*i+3}")
        k.i(f"ds_write_b64 v13, {vr(XR+2*i,2)} offset:{128*i}")
    k.i("v_and_b32 v15, 15, v2")
    k.i(f"v_mul_u32_u24 v14, {RS}, v15")
    k.i("v_lshrrev_b32 v12, 4, v2")
    k.i("v_lshl_add_u32 v14, v12, 4, v14")
    k.stamp(3)
    k.wait(lg=0)
    k.i("s_barrier")
    k.stamp(4)
    ACC, AF = 56, 76

    def act_read(reg, rt, ks):
        k.i(f"ds_read_b128 {vr(reg,4)}, v14 offset:{rt*16*RS + ks*64}")
    small_gemm(k, two, act_read, ACC, AF)
    k.stamp(5)
    nt = 2 if two else 1
    xs = [ACC + i for i in range(8 * nt)]
    tm = [16 + i for i in range(8 * nt)]
    k.i("v_add_u32 v12, s10, v15")
    k.i(f"s_movk_i32 s15, {S}")
    k.i("v_cmp_gt_u32 s[64:65], s15, v12")
    k.i("v_add_u32 v12, 16, v12")
    k.i("v_cmp_gt_u32 s[66:67], s15, v12")
    for o in gelu_ops(xs, tm, 11, 62):
        k.i(o)
    for t in range(nt):
        k.i(f"s_add_u32 s20, s14, {8*t}")
        k.i("s_lshr_b32 s21, s20, 1")
        k.i("s_lshr_b32 s22, s8, 4")
        k.i("s_mul_i32 s22, s22, 18")
        k.i("s_add_u32 s21, s21, s22")
        k.i("s_lshl_b32 s21, s21, 10")
        k.i("s_and_b32 s20, s20, 1")
        k.i("s_lshl_b32 s20, s20, 3")
        k.i("s_add_u32 s21, s21, s20")
        k.i(f"s_add_u32 s21, s21, {WS_G}")
        for rt in range(2):
            b = 16 + 8*t + 4*rt
            p = 40 + 4*t + 2*rt
            k.i(f"v_cvt_pk_bf16_f32 v{p}, v{b}, v{b+1}")
            k.i(f"v_cvt_pk_bf16_f32 v{p+1}, v{b+2}, v{b+3}")
            k.i(f"v_cndmask_b32 v{p}, 0, v{p}, s[{64+2*rt}:{65+2*rt}]")
            k.i(f"v_cndmask_b32 v{p+1}, 0, v{p+1}, s[{64+2*rt}:{65+2*rt}]")
            k.i(f"buffer_store_dwordx2 {vr(p,2)}, v3, s[44:47], s21 offen")
            if rt == 0:
                k.i(f"s_add_u32 s21, s21, {18*1024}")


def gen_k3(name):
    k = Kern()
    prologue(k, name, 256)
    k.i("s_lshr_b32 s6, s5, 2")
    k.i("s_and_b32 s7, s5, 3")
    k.i("s_lshl_b32 s8, s4, 6")
    k.i("s_lshl_b32 s9, s6, 5")
    k.i("s_add_u32 s8, s8, s9")
    k.i("v_lshlrev_b32 v3, 4, v2")
    k.i("v_add_u32 v4, 0x2000, v3")
    k.i("s_mul_i32 s14, s7, 9")
    k.i("s_add_u32 s14, s14, s3")
    k.i("v_and_b32 v15, 15, v2")
    k.i("v_lshrrev_b32 v12, 4, v2")
    k.wait(lg=0)
    srd(k, 48, 16, 0, ACT)
    srd(k, 44, 42, 0, 0x10000000)
    k.i("s_lshr_b32 s20, s8, 4")
    k.i(f"s_mul_i32 s20, s20, {18*1024}")
    k.i(f"s_add_u32 s20, s20, {WS_G}")
    k.i("s_lshl_b32 s21, s3, 10")
    k.i("s_add_u32 s20, s20, s21")
    k.i("s_mov_b32 m0, s21")
    for n in range(4):
        k.i("buffer_load_dwordx4 v3, s[44:47], s20 offen lds")
        k.i("s_add_u32 s20, s20, 8192")
        k.i("s_add_u32 m0, m0, 8192")
    k.i("s_cmp_ge_u32 s3, 4")
    k.i(f"s_cbranch_scc1 {name}_nodma")
    k.i("buffer_load_dwordx4 v3, s[44:47], s20 offen lds")
    k.label(f"{name}_nodma")
    k.vmq.pop()
    k.i("s_cmp_lg_u32 s3, 0")
    k.i(f"s_cbranch_scc1 {name}_one")
    st = k.save()
    k3_body(k, True)
    k.stamp(7)
    k.stamp_flush(2, WS_STAMP)
    k.i("s_endpgm")
    k.restore(st)
    k.label(f"{name}_one")
    k3_body(k, False)
    k.stamp(7)
    k.stamp_flush(2, WS_STAMP)
    k.label(f"{name}_end")
    k.i("s_endpgm")
    return k


def k3_body(k, two):
    nt = 2 if two else 1
    k.i("v_add_u32 v5, s8, v15")
    k.i("v_lshlrev_b32 v7, 4, v5")
    k.i("s_movk_i32 s12, 1152")
    k.i("v_mul_lo_u32 v5, v5, s12")
    k.i("v_lshl_add_u32 v5, v12, 3, v5")
    k.i("s_lshl_b32 s12, s14, 5")
    k.i("v_add_u32 v5, s12, v5")
    k.i("v_lshlrev_b32 v6, 8, v12")
    k.i("v_lshl_add_u32 v6, v15, 3, v6")
    k.i("s_lshl_b32 s12, s14, 10")
    k.i("v_add_u32 v6, s12, v6")
    k.i("s_lshr_b32 s12, s8, 5")
    k.i(f"s_mul_i32 s12, s12, {Y2_RB}")
    k.i(f"s_add_u32 s12, s12, {WS_Y2}")
    k.i("s_add_u32 s13, s12, 8192")
    k.i(f"s_movk_i32 s15, {16*1152}")
    k.i(f"s_mov_b32 s22, {WS_ST}")
    XR, YR, STR = 16, 24, 32
    for t in range(nt):
        for rt in range(2):
            k.i(f"buffer_load_dwordx2 {vr(XR+4*t+2*rt,2)}, v5, s[48:51], {'s15' if rt else '0'} offen offset:{256*t}")
            k.i(f"buffer_load_dwordx2 {vr(YR+4*t+2*rt,2)}, v6, s[44:47], {'s13' if t else 's12'} offen offset:{128*rt}")
    for rt in range(2):
        k.i(f"buffer_load_dwordx4 {vr(STR+4*rt,4)}, v7, s[44:47], s22 offen offset:{256*rt}")
    n_after = 4 * nt + 2
    small_gemm_wloads(k, WS_W2F, 14, two)
    n_after += 18 * nt
    k.stamp(1)
    k.wait(vm=n_after)
    k.stamp(2)
    k.i("s_barrier")
    k.stamp(3)
    ACC, AF = 56, 76

    def act_read(reg, rt, ks):
        k.i(f"ds_read_b128 {vr(reg,4)}, v3 offset:{(rt*18+ks)*1024}")
    small_gemm(k, two, act_read, ACC, AF)
    k.stamp(5)
    k.i(f"s_mov_b32 s24, {WS_H}")
    k.i(f"s_mov_b32 s25, {WS_H + 16*1152}")
    k.i(f"s_mov_b32 s26, {WS_X1}")
    k.i(f"s_mov_b32 s27, {WS_X1 + 16*1152}")
    for rt in range(2):
        st_ = STR + 4*rt
        k.i(f"v_mul_f32 v{st_}, v{st_}, v{st_+1}")
        k.i(f"v_mul_f32 v{st_+2}, v{st_+2}, v{st_+3}")
    T = 76
    for t in range(nt):
        for rt in range(2):
            st_ = STR + 4*rt
            xr, yr = XR + 4*t + 2*rt, YR + 4*t + 2*rt
            a = ACC + 8*t + 4*rt
            x, y, u = T, T + 4, T + 8
            for h in range(2):
                k.i(f"v_lshlrev_b32 v{x+2*h}, 16, v{xr+h}")
                k.i(f"v_and_b32 v{x+2*h+1}, 0xffff0000, v{xr+h}")
                k.i(f"v_lshlrev_b32 v{y+2*h}, 16, v{yr+h}")
                k.i(f"v_and_b32 v{y+2*h+1}, 0xffff0000, v{yr+h}")
            for e in range(4):
                k.i(f"v_fma_f32 v{u+e}, v{x+e}, v{st_+1}, -v{st_}")
            for e in range(4):
                k.i(f"v_fma_f32 v{x+e}, v{u+e}, v{y+e}, v{x+e}")
            for e in range(4):
                k.i(f"v_fma_f32 v{u+e}, v{x+e}, v{st_+3}, -v{st_+2}")
            for e in range(4):
                k.i(f"v_add_f32 v{u+e}, v{u+e}, v{a+e}")
            k.i(f"v_cvt_pk_bf16_f32 v{y}, v{x}, v{x+1}")
            k.i(f"v_cvt_pk_bf16_f32 v{y+1}, v{x+2}, v{x+3}")
            k.i(f"v_cvt_pk_bf16_f32 v{y+2}, v{u}, v{u+1}")
            k.i(f"v_cvt_pk_bf16_f32 v{y+3}, v{u+2}, v{u+3}")
            k.i(f"buffer_store_dwordx2 {vr(y,2)}, v5, s[44:47], s{24+rt} offen offset:{256*t}")
            k.i(f"buffer_store_dwordx2 {vr(y+2,2)}, v5, s[44:47], s{26+rt} offen offset:{256*t}")
            T = 76 + 12 * ((2*t + rt + 1) % 2)


A_BYTES = 64 * RS
H_BYTES = 18 * 4 * 1024
K4_LDS = A_BYTES + H_BYTES
K4_ACCUM = 168
NRING = (256 - K4_ACCUM) // 4


def gen_k4(name):
    k = Kern()
    prologue(k, name, 256)
    k.i("s_lshl_b32 s8, s4, 6")
    k.i("v_lshlrev_b32 v3, 4, v2")
    k.i("s_lshl_b32 s9, s3, 3")
    k.i("v_lshrrev_b32 v5, 3, v2")
    k.i("v_add_u32 v5, s9, v5")
    k.i("v_and_b32 v6, 7, v2")
    k.i(f"v_mul_u32_u24 v7, {RS}, v5")
    k.i("v_lshl_add_u32 v7, v6, 4, v7")
    k.i("v_add_u32 v5, s8, v5")
    k.i("s_movk_i32 s12, 1152")
    k.i("v_mul_lo_u32 v5, v5, s12")
    k.i("v_lshl_add_u32 v5, v6, 4, v5")
    k.wait(lg=0)
    srd(k, 44, 42, 0, 0x10000000)
    k.i(f"s_mov_b32 s12, {WS_X1}")
    XR = 16
    for i in range(9):
        k.i(f"buffer_load_dwordx4 {vr(XR+4*i,4)}, v5, s[44:47], s12 offen offset:{128*i}")
    k.i(f"s_mul_i32 s13, s5, {CHUNK}")
    k.i(f"s_add_u32 s14, s13, {WS_W3F}")
    k.i(f"s_add_u32 s15, s13, {WS_W4F}")
    k.i(f"s_mov_b32 s60, {f32(1.0/576)}")
    k.i(f"s_mov_b32 s61, {f32(1e-5)}")
    k.i(f"s_mov_b32 s62, {f32(-GELU_C0)}")
    k.i(f"v_mov_b32 v11, {f32(-GELU_C1)}")
    k.i("s_mov_b32 s63, 0x3f803f80")
    k.i("s_cmp_ge_u32 s3, 4")
    k.i(f"s_cbranch_scc1 {name}_b")
    st = k.save()
    k4_body(k, True)
    k.stamp(7)
    k.stamp_flush(3, WS_STAMP)
    k.i("s_endpgm")
    k.restore(st)
    k.label(f"{name}_b")
    k4_body(k, False)
    k.stamp(7)
    k.stamp_flush(3, WS_STAMP)
    k.label(f"{name}_end")
    k.i("s_endpgm")
    return k


def k4_body(k, isA):
    XR = 16
    if isA:
        k.i("s_lshl_b32 s20, s3, 11")
        k.i("v_add_u32 v4, s20, v3")
        k.i("s_lshl_b32 s20, s3, 10")
        k.i("s_add_u32 s21, s20, 8192")
        k.i("v_add_u32 v8, s21, v3")
        k.i("s_add_u32 s21, s20, 16384")
        k.i("v_add_u32 v12, s21, v3")
        k.i("s_lshl_b32 s20, s3, 12")
        k.i("v_add_u32 v10, s20, v3")
    else:
        k.i("s_lshl_b32 s20, s3, 11")
        k.i("s_add_u32 s20, s20, 4096")
        k.i("v_add_u32 v4, s20, v3")
        k.i("s_lshl_b32 s20, s3, 12")
        k.i("s_add_u32 s20, s20, 4096")
        k.i("v_add_u32 v10, s20, v3")
    k.i("s_lshl_b32 s20, s3, 11")
    k.i(f"s_add_u32 s20, s20, {20*1024}")
    k.i("v_add_u32 v13, s20, v3")

    p0 = [(4, 0), (4, 1024)] + ([(8, 0)] if isA else [])
    p1 = [(13, 0), (13, 1024)]
    p2a = [(10, 0), (10, 1024)] + ([(12, 0)] if isA else [])
    p2b = [(10, 2048), (10, 3072)]
    stream = []
    for ks in range(18):
        stream += [(14, ks, v, o) for v, o in p0]
    for ks in range(18):
        stream += [(14, ks, v, o) for v, o in p1]
    for ks in range(10):
        stream += [(15, ks, v, o) for v, o in p2a + p2b]
    for ks in range(10, 18):
        stream += [(15, ks, v, o) for v, o in p2a]
    for ks in range(10, 18):
        stream += [(15, ks, v, o) for v, o in p2b]
    state = {"next": 0, "cur": None}

    def issue_w():
        n = state["next"]
        if n >= len(stream):
            return
        if os.environ.get("K4_NOW") and n >= NRING:
            state["next"] = n + 1
            return
        sb, ks, v, o = stream[n]
        if state["cur"] != (sb, ks):
            k.i(f"s_add_u32 s24, s{sb}, {ks*SLAB}")
            state["cur"] = (sb, ks)
        k.i(f"buffer_load_dwordx4 {ar(4*(n % NRING),4)}, v{v}, s[44:47], s24 offen offset:{o}")
        state["next"] = n + 1

    k.stamp(1)
    vs, vq, vm, vrs, vt = 52, 53, 54, 55, 56
    k.i(f"v_mov_b32 v{vs}, 0")
    k.i(f"v_mov_b32 v{vq}, 0")
    for i in range(36):
        k.i(f"v_dot2c_f32_bf16 v{vs}, s63, v{XR+i}")
        k.i(f"v_dot2c_f32_bf16 v{vq}, v{XR+i}, v{XR+i}")
    if os.environ.get("K4PRO"): k.stamp(3)
    for _ in range(NRING):
        issue_w()
    if os.environ.get("K4PRO"): k.stamp(4)
    reduce8(k, [vs, vq])
    ln_finish(k, vs, vq, vm, vrs, vt, 61, 60)
    for i in range(9):
        T = 60 + 8 * (i % 2)
        for e in range(4):
            k.i(f"v_lshlrev_b32 v{T+2*e}, 16, v{XR+4*i+e}")
            k.i(f"v_and_b32 v{T+2*e+1}, 0xffff0000, v{XR+4*i+e}")
        for e in range(8):
            k.i(f"v_fma_f32 v{T+e}, v{T+e}, v{vrs}, v{vt}")
        for e in range(4):
            k.i(f"v_cvt_pk_bf16_f32 v{XR+4*i+e}, v{T+2*e}, v{T+2*e+1}")
        k.i(f"ds_write_b128 v7, {vr(XR+4*i,4)} offset:{128*i}")
    k.i("v_and_b32 v15, 15, v2")
    k.i(f"v_mul_u32_u24 v14, {RS}, v15")
    k.i("v_lshrrev_b32 v1, 4, v2")
    k.i("v_lshl_add_u32 v14, v1, 4, v14")
    k.i(f"v_add_u32 v5, {A_BYTES}, v3")
    k.i(f"v_add_u32 v6, {A_BYTES + 36864}, v3")
    k.i("s_lshl_b32 s20, s3, 12")
    if not isA:
        k.i("s_add_u32 s20, s20, 8192")
    k.i("v_add_u32 v7, s20, v5")
    if isA:
        k.i("s_lshr_b32 s20, s3, 1")
        k.i("s_lshl_b32 s20, s20, 12")
        k.i("s_and_b32 s21, s3, 1")
        k.i("s_lshl_b32 s21, s21, 3")
        k.i("s_add_u32 s20, s20, s21")
        k.i(f"s_add_u32 s20, s20, {4*4096}")
        k.i("v_add_u32 v9, s20, v5")
    k.i("s_lshl_b32 s20, s3, 12")
    k.i(f"s_add_u32 s20, s20, {10*4096}")
    k.i("v_add_u32 v1, s20, v5")
    k.i(f"s_mul_i32 s26, s5, {ACT}")
    k.i(f"s_add_u32 s26, s26, {WS_P}")
    k.i(f"s_mul_i32 s27, s4, {4*18*1024}")
    k.i("s_add_u32 s26, s26, s27")
    if isA:
        k.i("s_lshl_b32 s27, s3, 11")
        k.i("s_add_u32 s28, s26, s27")
        k.i("s_lshr_b32 s27, s3, 1")
        k.i("s_lshl_b32 s27, s27, 10")
        k.i("s_add_u32 s29, s26, s27")
        k.i("s_and_b32 s27, s3, 1")
        k.i("s_lshl_b32 s27, s27, 3")
        k.i("s_add_u32 s29, s29, s27")
        k.i("s_add_u32 s29, s29, 8192")
    else:
        k.i("s_lshl_b32 s27, s3, 11")
        k.i("s_add_u32 s28, s26, s27")
        k.i("s_add_u32 s28, s28, 2048")
    if os.environ.get("K4PRO"): k.stamp(5)
    k.wait(lg=0)
    k.i("s_barrier")

    ACC0 = 16
    ACC1 = 64
    ACC2 = 96
    AF = 128
    TM = 160
    n0 = len(p0)
    wn = {"i": 0}

    def run_seg(ksl, tiles_acc, act_addr, first_zero, filler, per):
        def rd(i, buf):
            for rt in range(4):
                v, o = act_addr(ksl[i], rt)
                yield f"ds_read_b128 {vr(AF+16*buf+4*rt,4)}, v{v} offset:{o}"
        for o in rd(0, 0):
            k.i(o)
        acc_credit = 0.0
        for i, ks in enumerate(ksl):
            nxt = list(rd(i + 1, (i + 1) & 1)) if i + 1 < len(ksl) else []
            if os.environ.get("K4_NOLDS") and i >= 1:
                nxt = []
            for t, ab in enumerate(tiles_acc):
                slot = wn["i"] % NRING
                for rt in range(4):
                    a = vr(ab + 4*rt, 4)
                    c = "0" if (first_zero and i == 0) else a
                    k.i(f"v_mfma_f32_16x16x32_bf16 {a}, {ar(4*slot,4)}, {vr(AF+16*(i&1)+4*rt,4)}, {c}")
                    if nxt and (t > 0 or rt > 0):
                        k.i(nxt.pop(0))
                    acc_credit += per
                    while filler and acc_credit >= 1.0:
                        k.i(filler.pop(0))
                        acc_credit -= 1.0
                wn["i"] += 1
                issue_w()
            for o in nxt:
                k.i(o)
        for o in filler:
            k.i(o)

    def gelu_pack_write(accs, waddr_pair, waddr_single):
        ops = []
        for rt in range(4):
            xs = [accs[0] + 4*rt + e for e in range(4)] + [accs[1] + 4*rt + e for e in range(4)]
            tm = [TM + e for e in range(8)]
            ops += gelu_ops(xs, tm, 11, 62)
            d = accs[0] + 4*rt
            for e in range(4):
                ops.append(f"v_cvt_pk_bf16_f32 v{d+e}, v{TM+2*e}, v{TM+2*e+1}")
            ops.append(f"ds_write_b128 v{waddr_pair}, {vr(d,4)} offset:{rt*1024}")
        if len(accs) > 2:
            for rp in range(2):
                xs = [accs[2] + 8*rp + e for e in range(8)]
                tm = [TM + e for e in range(8)]
                ops += gelu_ops(xs, tm, 11, 62)
                d = accs[2] + 8*rp
                for e in range(4):
                    ops.append(f"v_cvt_pk_bf16_f32 v{d+e}, v{TM+2*e}, v{TM+2*e+1}")
                ops.append(f"ds_write_b64 v{waddr_single}, {vr(d,2)} offset:{(2*rp)*1024}")
                ops.append(f"ds_write_b64 v{waddr_single}, {vr(d+2,2)} offset:{(2*rp+1)*1024}")
        return ops

    def a_addr(ks, rt):
        return (14, rt*16*RS + ks*64)

    def h_addr(ks, rt):
        o = (ks*4 + rt) * 1024
        return (5, o) if o < 36864 else (6, o - 36864)

    def store_ops(accs, sreg_pair, pair_imm, sreg_single):
        ops = []
        for rt in range(4):
            d = TM + 4*(rt & 1)
            for h in range(2):
                a = accs[h] + 4*rt
                ops.append(f"v_cvt_pk_bf16_f32 v{d+2*h}, v{a}, v{a+1}")
                ops.append(f"v_cvt_pk_bf16_f32 v{d+2*h+1}, v{a+2}, v{a+3}")
            ops.append(f"s_add_u32 s30, s{sreg_pair}, {rt*18*1024}")
            ops.append(f"buffer_store_dwordx4 {vr(d,4)}, v3, s[44:47], s30 offen offset:{pair_imm}")
        if len(accs) > 2:
            for rt in range(4):
                a = accs[2] + 4*rt
                ops.append(f"v_cvt_pk_bf16_f32 v{a}, v{a}, v{a+1}")
                ops.append(f"v_cvt_pk_bf16_f32 v{a+1}, v{a+2}, v{a+3}")
                ops.append(f"s_add_u32 s30, s{sreg_single}, {rt*18*1024}")
                ops.append(f"buffer_store_dwordx2 {vr(a,2)}, v3, s[44:47], s30 offen")
        return ops

    t0 = [ACC0 + 16*t for t in range(n0)]
    t1 = [ACC1, ACC1 + 16]
    t2a = t0
    t2b = [ACC2, ACC2 + 16]
    k.stamp(2)
    run_seg(list(range(18)), t0, a_addr, True, [], 0)
    if not os.environ.get("K4PRO"): k.stamp(3)
    f = gelu_pack_write(t0, 7, 9)
    run_seg(list(range(18)), t1, a_addr, True, f, len(f) / (18*8 - 24.0))
    k.wait(lg=0)
    k.i("s_barrier")
    if not os.environ.get("K4PRO"): k.stamp(4)
    f = gelu_pack_write(t1, 1, None)
    run_seg(list(range(10)), t2a + t2b, h_addr, True, f, len(f) / (10*4*(n0+2) - 40.0))
    k.wait(lg=0)
    k.i("s_barrier")
    if not os.environ.get("K4PRO"): k.stamp(5)
    run_seg(list(range(10, 18)), t2a, h_addr, False, [], 0)
    f = store_ops(t2a, 28, 0, 29)
    run_seg(list(range(10, 18)), t2b, h_addr, False, f, len(f) / (8*8 - 16.0))
    k.stamp(6)
    for o in store_ops(t2b, 28, 1024, None):
        k.i(o)


def gen_k5(name):
    k = Kern()
    NW = 128 * 18 // 4
    k.raw(f".globl {name}\n.p2align 8\n.type {name},@function\n{name}:")
    k.i(f"s_cmp_ge_u32 s2, {NW}")
    k.i(f"s_cbranch_scc1 {name}_end")
    k.i("s_load_dwordx2 s[38:39], s[0:1], 88")
    k.i("s_load_dwordx2 s[42:43], s[0:1], 104")
    k.i("v_lshrrev_b32 v1, 6, v0")
    k.i("v_and_b32 v2, 63, v0")
    k.i("v_readfirstlane_b32 s3, v1")
    k.i("v_lshlrev_b32 v3, 4, v2")
    k.i("s_lshl_b32 s4, s2, 2")
    k.i("s_add_u32 s4, s4, s3")
    k.i("s_mul_hi_u32 s5, s4, 0x0e38e38f")
    k.i("s_mul_i32 s6, s5, 18")
    k.i("s_sub_u32 s6, s4, s6")
    k.i("v_and_b32 v4, 15, v2")
    k.i("s_lshl_b32 s7, s5, 4")
    k.i("v_add_u32 v4, s7, v4")
    k.i("s_movk_i32 s7, 1152")
    k.i("v_mul_lo_u32 v4, v4, s7")
    k.i("v_lshrrev_b32 v5, 4, v2")
    k.i("v_lshl_add_u32 v4, v5, 3, v4")
    k.i("s_lshl_b32 s7, s6, 6")
    k.i("v_add_u32 v4, s7, v4")
    k.i("s_lshl_b32 s8, s4, 10")
    k.i(f"s_add_u32 s8, s8, {WS_P}")
    k.wait(lg=0)
    srd(k, 44, 42, 0, 0x10000000)
    srd(k, 48, 38, 0, ACT)
    for p in range(8):
        k.i(f"buffer_load_dwordx4 {vr(16+4*p,4)}, v3, s[44:47], s8 offen")
        if p < 7:
            k.i(f"s_add_u32 s8, s8, {ACT}")
    k.i(f"s_mov_b32 s9, {WS_H}")
    k.i(f"s_mov_b32 s10, {WS_X1}")
    for h in range(2):
        k.i(f"buffer_load_dwordx2 {vr(48+2*h,2)}, v4, s[44:47], s9 offen offset:{32*h}")
        k.i(f"buffer_load_dwordx2 {vr(52+2*h,2)}, v4, s[44:47], s10 offen offset:{32*h}")
    A = 8
    for p in range(10):
        src = 16 + 4*p
        for e in range(4):
            if p == 0:
                k.i(f"v_lshlrev_b32 v{A+2*e}, 16, v{src+e}")
                k.i(f"v_and_b32 v{A+2*e+1}, 0xffff0000, v{src+e}")
            else:
                k.i(f"v_lshlrev_b32 v6, 16, v{src+e}")
                k.i(f"v_and_b32 v7, 0xffff0000, v{src+e}")
                k.i(f"v_add_f32 v{A+2*e}, v{A+2*e}, v6")
                k.i(f"v_add_f32 v{A+2*e+1}, v{A+2*e+1}, v7")
    for e in range(4):
        k.i(f"v_cvt_pk_bf16_f32 v{16+e}, v{A+2*e}, v{A+2*e+1}")
    for h in range(2):
        k.i(f"buffer_store_dwordx2 {vr(16+2*h,2)}, v4, s[48:51], 0 offen offset:{32*h}")
    k.label(f"{name}_end")
    k.i("s_endpgm")
    return k


def kernels():
    return [
        ("k2_kernel", gen_k2("k2_kernel"), 256, 512, 32 * RS, 256, 96, 112),
        ("k3_kernel", gen_k3("k3_kernel"), 256, 512, 36 * 1024, 256, 96, 112),
        ("k4_kernel", gen_k4("k4_kernel"), 256, 512, K4_LDS, 256, 96, K4_ACCUM),
        ("k5_kernel", gen_k5("k5_kernel"), 576, 256, 0, 64, 96, 64),
    ]
```

```python
import os
from dsl import *
from common import *

KC_COPY = 4160
KC_CH = 4 * KC_COPY
UR0 = 4 * KC_CH
UR_CH = 4608
RL_RS = 1056
RL_TAIL = 32 * RL_RS
RL_WAVE = RL_TAIL + 4096
P0_LDS = 4 * RL_WAVE
TAP = 72
SC = " sc1"
LD_MODE = int(os.environ.get("LD_MODE", "2"))
DBG_W12, DBG_W34, DBG_Y = 0, 64, 128
N_Y = 145


def dbg_add(k, off):
    k.i("s_mov_b64 exec, 1")
    k.i("v_mov_b32 v1, 1")
    k.i("v_mov_b32 v10, 0")
    k.i(f"global_atomic_add v10, v1, s[40:41] offset:{off} sc1")
    k.i("s_mov_b64 exec, -1")


_u = [0]


def y_arrive(k):
    _u[0] += 1
    L = f"Lya{_u[0]}"
    k.i("s_mov_b64 exec, 1")
    k.i("v_mov_b32 v1, 1")
    k.i("v_mov_b32 v10, 0")
    k.i(f"global_atomic_add v1, v10, v1, s[40:41] offset:{DBG_Y} sc0 sc1")
    k.i("s_mov_b64 exec, -1")
    k.wait(vm=0)
    k.i("v_readfirstlane_b32 s12, v1")
    k.i("s_add_u32 s12, s12, 1")
    k.i(f"s_mul_hi_u32 s13, s12, {-(-(1 << 32) // N_Y)}")
    k.i(f"s_mul_i32 s13, s13, {N_Y}")
    k.i("s_cmp_lg_u32 s12, s13")
    k.i(f"s_cbranch_scc1 {L}")
    k.i("v_lshlrev_b32 v10, 7, v11")
    k.i("v_mov_b32 v1, 1")
    k.i(f"s_mov_b32 s12, {WS_FLAG + 128*128}")
    k.i("s_mov_b32 exec_hi, 0")
    k.i(f"buffer_store_dword v1, v10, s[44:47], s12 offen{SC}")
    k.i("s_mov_b32 exec_hi, -1")
    k.label(L)
    k.vmq = []


def conv_consumer(k, st):
    k.i("s_lshl_b32 s11, s10, 2")
    k.i("s_add_u32 s11, s11, s3")
    k.i("s_lshr_b32 s13, s11, 1")
    k.i("s_lshl_b32 s13, s13, 2")
    k.i("s_load_dword s56, s[26:27], s13")
    k.i("s_lshl_b32 s12, s11, 12")
    k.i("s_add_u32 s60, s24, s12")
    k.i("s_addc_u32 s61, s25, 0")
    k.i("s_and_b32 s61, s61, 0xffff")
    k.i("s_movk_i32 s62, 4096")
    k.i("s_mov_b32 s63, 0x20000")
    k.i("v_lshlrev_b32 v5, 4, v11")
    KL = 16
    for r in range(4):
        for m in range(3):
            k.i(f"buffer_load_dwordx4 {vr(KL + (r*3+m)*4, 4)}, v5, s[60:63], 0 offen offset:{1024*r + 4*m}")
    k.i(f"s_mul_i32 s14, s3, {KC_CH}")
    k.i(f"s_mul_i32 s15, s3, {UR_CH}")
    k.i(f"s_add_u32 s15, s15, {UR0}")
    k.i("v_add_u32 v6, s14, v5")
    k.i("v_and_b32 v12, 15, v11")
    k.i("v_lshrrev_b32 v15, 4, v11")
    k.i("v_add_u32 v8, 1, v12")
    k.i("v_and_b32 v9, 3, v8")
    k.i(f"v_mul_u32_u24 v9, {KC_COPY}, v9")
    k.i("v_and_b32 v8, 0xfffffffc, v8")
    k.i("v_add_u32 v8, 24, v8")
    k.i("v_lshlrev_b32 v10, 3, v15")
    k.i("v_sub_u32 v8, v8, v10")
    k.i("v_lshlrev_b32 v8, 1, v8")
    k.i("v_add3_u32 v8, v8, v9, s14")
    k.i("v_lshlrev_b32 v9, 5, v12")
    k.i("v_lshl_add_u32 v10, v15, 3, v9")
    k.i("v_lshl_add_u32 v9, v15, 4, v9")
    k.i("s_add_u32 s57, s15, 528")
    k.i("v_sub_u32 v9, s57, v9")
    k.i("v_lshrrev_b32 v7, 1, v12")
    k.i("v_lshlrev_b32 v7, 6, v7")
    k.i("v_and_b32 v4, 1, v12")
    k.i("v_lshl_add_u32 v7, v4, 4, v7")
    k.i("v_lshl_add_u32 v7, v15, 2, v7")
    k.i("s_add_u32 s57, s15, 504")
    k.i("v_sub_u32 v10, s57, v10")
    Z = 84
    for i in range(4):
        k.i(f"v_mov_b32 v{Z+i}, 0")
    k.i("v_add_u32 v13, s15, v5")
    k.i("s_mov_b64 exec, 0x3fffffff")
    k.i(f"ds_write_b128 v13, {vr(Z,4)} offset:4096")
    k.i("s_mov_b64 exec, -1")
    k.i("v_lshrrev_b32 v13, 1, v11")
    k.i(f"v_mul_u32_u24 v13, {KC_COPY}, v13")
    k.i("v_and_b32 v4, 1, v11")
    k.i("v_lshl_add_u32 v13, v4, 4, v13")
    k.i("v_add_u32 v13, s14, v13")
    k.i("s_mov_b64 exec, 0xff")
    k.i(f"ds_write_b128 v13, {vr(Z,4)}")
    k.i("s_mov_b64 exec, -1")
    ACC = 88
    for i in range(32):
        k.i(f"v_mov_b32 v{ACC+i}, 0")
    k.wait(lg=0)
    k.i("s_lshl_b32 s57, s56, 16")
    k.i("s_and_b32 s58, s56, 0xffff0000")
    k.i("s_bitcmp1_b32 s3, 0")
    k.i("s_cselect_b32 s56, s58, s57")
    T = 64
    for r in range(4):
        L = [KL + (r*3+m)*4 for m in range(3)]
        for i in range(4):
            k.i(f"v_alignbit_b32 v{T+i}, v{L[1]+i}, v{L[0]+i}, 16")
        for i in range(4):
            k.i(f"v_alignbit_b32 v{T+4+i}, v{L[2]+i}, v{L[1]+i}, 16")
        k.i(f"ds_write_b128 v6, {vr(L[0],4)} offset:{0*KC_COPY + 32 + 1024*r}")
        k.i(f"ds_write_b128 v6, {vr(L[1],4)} offset:{2*KC_COPY + 32 + 1024*r}")
        k.i(f"ds_write_b128 v6, {vr(T,4)} offset:{1*KC_COPY + 32 + 1024*r}")
        k.i(f"ds_write_b128 v6, {vr(T+4,4)} offset:{3*KC_COPY + 32 + 1024*r}")
        if r == 0:
            k.i(f"v_lshlrev_b32 v{T+8}, 16, v{L[0]}")
            k.i(f"v_alignbit_b32 v{T+9}, v{L[0]+1}, v{L[0]}, 16")
            k.i("s_mov_b64 exec, 1")
            k.i(f"ds_write_b32 v6, v{T+8} offset:{1*KC_COPY + 28}")
            k.i(f"ds_write_b32 v6, v{L[0]} offset:{2*KC_COPY + 28}")
            k.i(f"ds_write_b64 v6, {vr(T+8,2)} offset:{3*KC_COPY + 24}")
            k.i("s_mov_b64 exec, -1")
        T = 64 + 10 * ((r + 1) % 2)
    st(k, "p_kc")
    import km
    km.srd(k, 64, 16, 0, ACT)
    k.i("s_mul_i32 s68, s72, 1152")
    k.i("s_lshl_b32 s69, s3, 10")
    k.i("s_add_u32 s68, s68, s69")
    k.i("v_add_u32 v2, s68, v5")
    k.i(f"s_add_u32 m0, s69, {km.XL}")
    xl = []
    for n in range(9):
        g = []
        if n:
            g += ["v_add_u32 v2, 0x1000, v2", "s_add_u32 m0, m0, 4096"]
        g.append("buffer_load_dwordx4 v2, s[64:67], 0 offen lds")
        xl += [g, [], [], [], []]
    FR, GR = 120, 152

    def f_load(i1, i0):
        k.i(f"ds_read_b64 {vr(FR+4*i1,2)}, v8 offset:{512*i1 + 64*i0}")
        k.i(f"ds_read_b64 {vr(FR+4*i1+2,2)}, v8 offset:{512*i1 + 64*i0 + 8}")

    def g_load(buf, slot, cp, i0):
        k.i(f"ds_read_b128 {vr(GR+8*buf+4*slot,4)}, v9 offset:{512*(7-cp) + 64*i0}")

    for q in range(4):
        cps = [2*q, 2*q + 1]
        ni1 = 8 - cps[0]
        k.wait(lg=0)
        for i1 in range(ni1):
            f_load(i1, 0)
        k.i("s_barrier")
        st(k, f"p_q{q}")
        for s_, cp in enumerate(cps):
            g_load(0, s_, cp, 0)
        wl = xl if q == 2 else []
        for i0 in range(8):
            buf = i0 & 1
            gq = list(enumerate(cps)) if i0 < 7 else []
            for i1 in range(ni1):
                for s_, cp in enumerate(cps):
                    ct = cp + i1
                    if ct > 7:
                        continue
                    k.i(f"v_mfma_f32_16x16x32_bf16 {vr(ACC+4*ct,4)}, {vr(FR+4*i1,4)}, {vr(GR+8*buf+4*s_,4)}, {vr(ACC+4*ct,4)}")
                    if gq:
                        a, b = gq.pop(0)
                        g_load(buf ^ 1, a, b, i0 + 1)
                    if wl:
                        for o in wl.pop(0):
                            k.i(o)
                if i0 < 7:
                    f_load(i1, i0 + 1)
        assert not wl
    st(k, "p_mf")
    UE = 16
    for ct in range(8):
        k.i(f"ds_read_b64 {vr(UE+2*ct,2)}, v10 offset:{512*(7-ct)}")
    k.i(f"s_mul_i32 s57, s3, {KC_CH + 64}")
    k.i("v_add_u32 v7, s57, v7")
    TE = 40
    for ct in range(8):
        a = ACC + 4*ct
        t = TE + 8*(ct & 1)
        k.i(f"v_lshlrev_b32 v{t+3}, 16, v{UE+2*ct}")
        k.i(f"v_and_b32 v{t+2}, 0xffff0000, v{UE+2*ct}")
        k.i(f"v_lshlrev_b32 v{t+1}, 16, v{UE+2*ct+1}")
        k.i(f"v_and_b32 v{t+0}, 0xffff0000, v{UE+2*ct+1}")
        for r in range(4):
            k.i(f"v_fma_f32 v{t+r}, v{t+r}, s56, v{a+r}")
        k.i(f"v_cvt_pk_bf16_f32 v{t+4}, v{t+0}, v{t+2}")
        k.i(f"v_cvt_pk_bf16_f32 v{t+5}, v{t+1}, v{t+3}")
        k.i(f"ds_write2_b32 v7, v{t+4}, v{t+5} offset0:{128*(ct&1)} offset1:{128*(ct&1) + 8}")
        if ct & 1:
            k.i("v_add_u32 v7, 0x400, v7")
    k.wait(lg=0)


def conv_loader(k, st, tap):
    k.i("s_sub_u32 s11, s3, 4")
    k.i("s_lshl_b32 s12, s10, 5")
    k.i("s_load_dwordx8 s[48:55], s[22:23], s12")
    k.i("v_and_b32 v4, 31, v11")
    k.i("v_mul_u32_u24 v5, 4608, v4")
    k.i(f"s_mul_i32 s12, s11, {128*1152}")
    k.i("s_lshl_b32 s13, s10, 3")
    k.i("s_add_u32 s12, s12, s13")
    k.i("v_add_u32 v5, s12, v5")
    k.i("v_cmp_gt_u32 vcc, 32, v11")
    k.i("v_mov_b32 v2, s20")
    k.i("v_mov_b32 v3, s21")
    k.i("v_mov_b32 v6, s18")
    k.i("v_mov_b32 v7, s19")
    k.i("v_cndmask_b32 v2, v2, v6, vcc")
    k.i("v_cndmask_b32 v3, v3, v7, vcc")
    k.i("v_add_co_u32 v2, vcc, v2, v5")
    k.i("v_addc_co_u32 v3, vcc, 0, v3, vcc")
    G0 = 16
    def gl(Q, r): return G0 + 14*Q + 2*r
    def gh(Q, r): return G0 + 14*Q + 8 + 2*r
    for i in range(6):
        k.i(f"v_mov_b32 v{gh(0,0)+i}, 0")
    def issue(Q):
        for r in range(4):
            k.i(f"global_load_dwordx2 {vr(gl(Q,r),2)}, v[2:3], off offset:{1152*r}")
        if Q == 0:
            k.i("s_cmp_lg_u32 s11, 0")
            k.i("s_cselect_b64 exec, 1, 0")
            k.i("s_cbranch_execz Lld_nohalo")
        else:
            k.i("s_mov_b64 exec, 1")
        n0 = len(k.vmq)
        for r in range(3):
            k.i(f"global_load_dwordx2 {vr(gh(Q,r),2)}, v[2:3], off offset:{-3456 + 1152*r}")
        if Q == 0:
            k.label("Lld_nohalo")
            k.vmq = k.vmq[:n0]
        k.i("s_mov_b64 exec, -1")
        if Q < 3:
            k.i(f"v_add_co_u32 v2, vcc, {512*1152}, v2")
            k.i("v_addc_co_u32 v3, vcc, 0, v3, vcc")
    issue(0)
    issue(1)
    k.i("v_lshlrev_b32 v7, 3, v4")
    k.i("s_lshl_b32 s12, s11, 8")
    k.i(f"s_sub_u32 s12, {UR0 + 1016}, s12")
    k.i("v_sub_u32 v7, s12, v7")
    k.wait(lg=0)
    for c in range(4):
        for h in range(2):
            k.i(f"s_lshl_b32 s{tap+4*c+2*h}, s{48+2*c+h}, 16")
            k.i(f"s_and_b32 s{tap+4*c+2*h+1}, s{48+2*c+h}, 0xffff0000")
    U, V, VP, PK, TT = 72, 100, 116, 124, 132
    for Q in range(4):
        if Q == 0:
            k.wait(vm=7)
        for r in range(3):
            for h in range(2):
                k.i(f"v_mov_b32_dpp v{gh(Q,r)+h}, v{gl(Q,r+1)+h} wave_shr:1 row_mask:0xf bank_mask:0xf")
        for r in range(4):
            for h in range(2):
                k.i(f"v_permlane32_swap_b32 v{gl(Q,r)+h}, v{VP+2*r+h}")
        for rr in range(7):
            src = gh(Q, rr) if rr < 3 else gl(Q, rr - 3)
            for h in range(2):
                k.i(f"v_lshlrev_b32 v{U+rr*4+2*h}, 16, v{src+h}")
                k.i(f"v_and_b32 v{U+rr*4+2*h+1}, 0xffff0000, v{src+h}")
        for r in range(4):
            for h in range(2):
                k.i(f"v_lshlrev_b32 v{V+r*4+2*h}, 16, v{VP+2*r+h}")
                k.i(f"v_and_b32 v{V+r*4+2*h+1}, 0xffff0000, v{VP+2*r+h}")
        for c in range(4):
            t = TT + 4*(c & 1)
            for r in range(4):
                k.i(f"v_mul_f32 v{t+r}, s{tap+4*c+3}, v{U+(r+0)*4+c}")
            for j in (2, 1, 0):
                for r in range(4):
                    k.i(f"v_fmac_f32 v{t+r}, s{tap+4*c+j}, v{U+(r+3-j)*4+c}")
            for r in range(4):
                k.i(f"v_mul_f32 v{t+r}, v{t+r}, v{V+r*4+c}")
            k.i(f"v_cvt_pk_bf16_f32 v{PK+2*c}, v{t+3}, v{t+2}")
            k.i(f"v_cvt_pk_bf16_f32 v{PK+2*c+1}, v{t+1}, v{t+0}")
        k.i("s_mov_b32 exec_hi, 0")
        for c in range(4):
            k.i(f"ds_write_b64 v7, {vr(PK+2*c,2)} offset:{c*UR_CH + 1024*(3-Q)}")
        k.i("s_mov_b32 exec_hi, -1")
        k.wait(lg=0)
        st(k, f"l_q{Q}")
        if LD_MODE == 1 and Q + 2 < 4:
            issue(Q + 2)
        k.i("s_barrier")
        if LD_MODE == 2 and Q + 2 < 4:
            issue(Q + 2)


def conv_tail(k):
    k.i("v_bfe_u32 v2, v11, 2, 2")
    k.i(f"v_mul_u32_u24 v2, {KC_CH + 64}, v2")
    k.i("v_and_b32 v3, 3, v11")
    k.i("v_lshl_add_u32 v2, v3, 3, v2")
    k.i("v_lshrrev_b32 v3, 4, v11")
    k.i("v_lshl_add_u32 v2, v3, 6, v2")
    k.i("s_lshl_b32 s57, s3, 9")
    k.i("v_add_u32 v2, s57, v2")
    k.i("v_lshrrev_b32 v3, 3, v11")
    k.i(f"v_mul_u32_u24 v3, {Y2_T}, v3")
    k.i("v_and_b32 v4, 7, v11")
    k.i("v_lshl_add_u32 v3, v4, 4, v3")
    k.i(f"s_mul_i32 s57, s3, {16*Y2_T}")
    k.i("s_lshl_b32 s58, s10, 7")
    k.i("s_add_u32 s57, s57, s58")
    k.i(f"s_add_u32 s57, s57, {WS_Y2}")
    import km
    k.i("s_cmp_lg_u32 s3, 4")
    k.i("s_cbranch_scc1 Lcv_nopk")
    km.peek_dbg(k, DBG_W12, 111)
    k.label("Lcv_nopk")
    k.i("s_barrier")
    for n in range(2):
        k.i(f"ds_read_b64_tr_b16 {vr(16+4*n,2)}, v2 offset:{256*n}")
        k.i(f"ds_read_b64_tr_b16 {vr(18+4*n,2)}, v2 offset:{256*n + 32}")
    for n in range(2):
        k.i(f"buffer_store_dwordx4 {vr(16+4*n,4)}, v3, s[44:47], s57 offen{SC}")
        if n < 1:
            k.i(f"s_add_u32 s57, s57, {8*Y2_T}")
    k.wait(vm=0, lg=0)
    k.i("s_barrier")
    k.i("s_cmp_lg_u32 s3, 0")
    k.i("s_cbranch_scc1 Lcv_sig")
    y_arrive(k)
    k.label("Lcv_sig")


def relayout(k, st, G):
    k.i(f"s_mul_i32 s12, s10, {SLAB}")
    k.i("s_mov_b64 s[48:49], s[30:31]")
    k.i(f"s_mov_b32 s50, {D*D*2}")
    k.i("s_movk_i32 s13, 1152")
    k.i("s_mov_b32 s14, 0")
    if G == 8:
        k.i(f"s_sub_u32 s15, s12, {18*SLAB}")
        k.i("s_cmp_ge_u32 s10, 18")
        k.i("s_cselect_b64 s[48:49], s[32:33], s[48:49]")
        k.i("s_cselect_b32 s12, s15, s12")
        k.i("s_mov_b32 s15, 0")
        k.i("s_mov_b32 s11, s3")
    else:
        k.i("s_sub_u32 s15, s10, 36")
        k.i("s_mul_hi_u32 s56, s15, 0x0e38e38f")
        k.i("s_mul_i32 s57, s56, 18")
        k.i("s_sub_u32 s57, s15, s57")
        k.i(f"s_mul_i32 s57, s57, {32*9216}")
        k.i("s_mul_i32 s56, s56, 1152")
        k.i("s_add_u32 s12, s57, s56")
        k.i("s_mov_b64 s[48:49], s[34:35]")
        k.i("s_movk_i32 s13, 9216")
        k.i(f"s_mov_b32 s50, {D*F*2}")
        k.i("s_sub_u32 s15, s10, 180")
        k.i(f"s_mul_i32 s15, s15, {SLAB}")
        k.i("s_cmp_ge_u32 s10, 180")
        k.i("s_cselect_b64 s[48:49], s[36:37], s[48:49]")
        k.i("s_cselect_b32 s14, 1, s14")
        k.i("s_cselect_b32 s12, s15, s12")
        k.i("s_cselect_b32 s13, 1152, s13")
        k.i("s_and_b32 s15, s3, 3")
        k.i(f"s_mul_i32 s15, s15, {RL_WAVE}")
        k.i("s_lshr_b32 s11, s3, 2")
    k.i("s_and_b32 s49, s49, 0xffff")
    k.i("s_mov_b32 s51, 0x20000")
    k.i("v_lshlrev_b32 v5, 4, v11")
    k.i("v_lshrrev_b32 v6, 3, v11")
    k.i("v_mul_lo_u32 v6, v6, s13")
    k.i("v_and_b32 v7, 7, v11")
    k.i("v_lshl_add_u32 v6, v7, 4, v6")
    k.i("v_add_u32 v6, 1024, v6")
    if G == 2:
        k.raw("    s_waitcnt vmcnt(0)")
    NR = 32 // G
    k.i(f"s_mul_i32 s56, s11, {NR}")
    k.i(f"s_mul_i32 s57, s56, {RL_RS}")
    k.i("s_add_u32 m0, s15, s57")
    k.i("s_mul_i32 s56, s56, s13")
    k.i("s_add_u32 s56, s56, s12")
    for r in range(NR):
        k.i("buffer_load_dwordx4 v5, s[48:51], s56 offen lds")
        if r < NR - 1:
            k.i("s_add_u32 s56, s56, s13")
            k.i(f"s_add_u32 m0, m0, {RL_RS}")
    if G == 2:
        k.i("s_lshl_b32 s56, s11, 1")
    else:
        k.i("s_and_b32 s56, s11, 3")
    k.i("s_lshl_b32 s57, s56, 10")
    k.i("s_add_u32 s57, s57, s15")
    k.i(f"s_add_u32 m0, s57, {RL_TAIL}")
    k.i("s_lshl_b32 s57, s13, 3")
    k.i("s_mul_i32 s56, s56, s57")
    k.i("s_add_u32 s56, s56, s12")
    k.i("buffer_load_dwordx4 v6, s[48:51], s56 offen lds")
    if G == 2:
        k.i("s_add_u32 s56, s56, s57")
        k.i("s_add_u32 m0, m0, 1024")
        k.i("buffer_load_dwordx4 v6, s[48:51], s56 offen lds")
    k.i("s_cmp_eq_u32 s14, 1")
    k.i("s_cselect_b32 s56, 2, 3")
    k.i("s_cselect_b32 s57, 16, 4")
    k.i("v_lshrrev_b32 v7, 4, v11")
    k.i("v_lshlrev_b32 v7, s56, v7")
    k.i("v_bfe_u32 v8, v11, 2, 2")
    k.i("v_add_u32 v7, v7, v8")
    k.i("v_and_b32 v8, 3, v11")
    k.i("v_lshlrev_b32 v8, 3, v8")
    k.i("v_add_u32 v8, s15, v8")
    if G == 2:
        k.i("s_mul_i32 s59, s11, 18")
    else:
        k.i("s_mov_b32 s59, s11")
    k.i("s_lshl_b32 s58, s59, 5")
    k.i(f"v_mul_u32_u24 v9, {RL_RS}, v7")
    k.i("v_add3_u32 v9, v9, v8, s58")
    k.i(f"s_mul_i32 s58, s57, {RL_RS}")
    k.i("v_add_u32 v4, s58, v9")
    k.i("v_lshl_add_u32 v12, v7, 7, v8")
    k.i(f"v_add_u32 v12, {RL_TAIL}, v12")
    k.i("s_lshl_b32 s58, s57, 7")
    if G == 8:
        k.i("s_lshl_b32 s56, s11, 5")
        k.i("v_add_u32 v12, s56, v12")
    k.i("v_add_u32 v13, s58, v12")
    if G == 2:
        k.i(f"v_add_u32 v14, {14*32}, v9")
        k.i(f"v_add_u32 v15, {14*32}, v4")
        k.i("s_cmp_eq_u32 s11, 1")
    else:
        k.i("v_mov_b32 v14, v9")
        k.i("v_mov_b32 v15, v4")
        k.i("s_cmp_lt_u32 s11, 4")
    k.i("s_cselect_b64 vcc, -1, 0")
    k.i("v_cndmask_b32 v12, v14, v12, vcc")
    k.i("v_cndmask_b32 v13, v15, v13, vcc")
    k.i(f"s_mul_i32 s58, s10, {SLAB}")
    if G == 2:
        k.i(f"s_add_u32 s57, s59, 14")
    else:
        k.i("s_cselect_b32 s57, 32, 0")
        k.i("s_add_u32 s57, s57, s59")
    k.i("s_lshl_b32 s57, s57, 10")
    k.i("s_add_u32 s57, s57, s58")
    k.i("s_lshl_b32 s59, s59, 10")
    k.i("s_add_u32 s58, s58, s59")
    st(k, "r_iss")
    k.wait(vm=0)
    k.i("s_barrier")
    st(k, "r_ld")
    if G == 2:
        tiles = [("m", i) for i in range(14)] + [("x", i) for i in range(4)]
    else:
        tiles = [("m", 8*i) for i in range(4)] + [("x", 0)]
    NB = 8

    def rd(n):
        b = 16 + 4*(n % NB)
        kind, t = tiles[n]
        va, vb = ("v9", "v4") if kind == "m" else ("v12", "v13")
        k.i(f"ds_read_b64_tr_b16 {vr(b,2)}, {va} offset:{32*t}")
        k.i(f"ds_read_b64_tr_b16 {vr(b+2,2)}, {vb} offset:{32*t}")
    for n in range(min(6, len(tiles))):
        rd(n)
    cur = 0
    for n in range(len(tiles)):
        b = 16 + 4*(n % NB)
        kind, t = tiles[n]
        if kind == "m":
            while 1024*t - cur > 4095:
                k.i("s_add_u32 s58, s58, 4096")
                cur += 4096
            k.i(f"buffer_store_dwordx4 {vr(b,4)}, v5, s[44:47], s58 offen offset:{1024*t - cur}{SC}")
        else:
            k.i(f"buffer_store_dwordx4 {vr(b,4)}, v5, s[44:47], s57 offen offset:{1024*t}{SC}")
        if n + 6 < len(tiles):
            rd(n + 6)


def phase0(k, name, st, tap):
    k.i("s_cmp_ge_u32 s4, 18")
    k.i(f"s_cbranch_scc1 {name}_nonconv")
    k.i("s_mul_i32 s10, s5, 18")
    k.i("s_add_u32 s10, s10, s4")
    k.i("s_cmp_ge_u32 s3, 4")
    k.i(f"s_cbranch_scc1 {name}_loader")
    sv = k.save()
    conv_consumer(k, st)
    k.i(f"s_branch {name}_ctail")
    k.restore(sv)
    k.label(f"{name}_loader")
    conv_loader(k, st, tap)
    k.label(f"{name}_ctail")
    k.vmq, k.lgq = [], []
    k.i("s_nop 7")
    conv_tail(k)
    k.i(f"s_branch {name}_common")
    k.restore(sv)
    k.label(f"{name}_nonconv")
    k.i("s_sub_u32 s11, s4, 18")
    k.i("s_cmp_ge_u32 s11, 9")
    k.i(f"s_cbranch_scc1 {name}_rl12")
    k.i("s_lshl_b32 s10, s11, 2")
    k.i("s_and_b32 s12, s3, 3")
    k.i("s_add_u32 s10, s10, s12")
    k.i("s_mul_i32 s12, s5, 18")
    k.i("s_add_u32 s12, s12, s10")
    k.i("s_cmp_lt_u32 s10, 18")
    k.i("s_cselect_b32 s10, 36, 162")
    k.i("s_add_u32 s10, s10, s12")
    relayout(k, st, 2)
    k.i(f"s_branch {name}_rl_done2")
    k.restore(sv)
    k.label(f"{name}_rl12")
    k.i("s_sub_u32 s10, s11, 9")
    k.i("s_lshl_b32 s10, s10, 3")
    k.i("s_add_u32 s10, s10, s5")
    k.i("s_cmp_ge_u32 s10, 36")
    k.i(f"s_cbranch_scc1 {name}_misc")
    relayout(k, st, 8)
    k.wait(vm=0, lg=0)
    k.i("s_barrier")
    k.i("s_cmp_lg_u32 s3, 0")
    k.i(f"s_cbranch_scc1 {name}_cpf")
    dbg_add(k, DBG_W12)
    k.label(f"{name}_cpf")
    k.i("s_cmp_ge_u32 s10, 8")
    k.i(f"s_cbranch_scc1 {name}_common")
    k.i("v_lshlrev_b32 v12, 7, v0")
    k.i("s_mov_b32 s12, text_end-text_pc0")
    for n in range(2):
        k.i("v_cmp_gt_u32 vcc, s12, v12")
        k.i("s_and_saveexec_b64 s[14:15], vcc")
        k.i(f"s_cbranch_execz {name}_cpf_done")
        k.i("global_load_dword v166, v12, s[6:7]")
        k.i("v_add_u32 v12, 0x10000, v12")
    k.label(f"{name}_cpf_done")
    k.raw("    s_mov_b64 exec, -1")
    k.i(f"s_branch {name}_common")
    k.restore(sv)
    k.label(f"{name}_misc")
    k.i("s_cmp_lg_u32 s2, 255")
    k.i(f"s_cbranch_scc1 {name}_common")
    k.i("s_cmp_lg_u32 s3, 0")
    k.i(f"s_cbranch_scc1 {name}_common")
    k.i("v_lshlrev_b32 v12, 7, v11")
    k.i("v_mov_b32 v16, 0")
    k.i(f"s_mov_b32 s12, {WS_FLAG}")
    k.i(f"buffer_store_dword v16, v12, s[44:47], s12 offen{SC}")
    k.i(f"s_add_u32 s12, s12, 8192")
    k.i(f"buffer_store_dword v16, v12, s[44:47], s12 offen{SC}")
    k.i(f"s_add_u32 s12, s12, 8192")
    k.i(f"buffer_store_dword v16, v12, s[44:47], s12 offen{SC}")
    k.wait(vm=0)
    dbg_add(k, DBG_W12)
    y_arrive(k)
    k.i(f"s_branch {name}_common")
    k.label(f"{name}_rl_done2")
    k.raw("    s_waitcnt lgkmcnt(0)")
    k.raw("    s_barrier")
    k.vmq, k.lgq = [], []
    k.label(f"{name}_common")
    k.i("s_nop 7")
```

```python
import struct, os
from dsl import *
from common import *
from k2345 import f32, srd, gelu_ops, reduce16_stride4, reduce8, ln_finish, RS, GELU_C0, GELU_C1

A_BYTES = 64 * RS
H_BYTES = 18 * 4 * 1024
KM_LDS = A_BYTES + H_BYTES
ACCUM = 168
NRING = (256 - ACCUM) // 4
GT_OFF = 94208
XL = 94208
YL = 0
AT = 55296
CNT_A = WS_FLAG
CNT_B = WS_FLAG + 64 * 128
CNT_C = WS_FLAG + 96 * 128
SC = " sc1"
POLL_SLEEP = int(os.environ.get("POLL_SLEEP", "4"))
_uid = [0]


STMAP = {
    "": {"start": 0, "a_x": 1, "a_end": 2, "b_wait": 3, "b_end": 4, "c_wait": 5, "c_main": 6, "end": 7},
    "P": {"start": 0, "p_kc": 1, "p_q0": 2, "p_q1": 3, "p_q2": 4, "p_q3": 5, "p_mf": 6, "common": 7,
          "l_q0": 2, "l_q1": 3, "l_q2": 4, "l_q3": 5, "r_iss": 1, "r_ld": 2},
    "F": {"start": 0, "common": 1, "a_yw": 2, "a_end": 3, "b_end": 4, "c_main": 5, "c_end": 6, "end": 7},
    "A2": {"common": 0, "a_w12": 1, "a_yw": 2, "a_y": 3, "a_ln": 4, "a_bar": 5, "a_gemm": 6, "a_end": 7},
    "A": {"start": 0, "a_issued": 1, "a_x": 2, "a_wissued": 3, "a_ln": 4, "a_bar": 5, "a_gemm": 6, "a_end": 7},
    "B": {"a_end": 0, "b_wait": 1, "b_g": 2, "b_gemm": 3, "b_st": 4, "b_end": 5, "c_wait": 6, "c_x1": 7},
    "C": {"c_main": 0, "c_s1": 1, "c_s2": 2, "c_s3": 3, "c_s4": 4, "c_end": 5, "d_wait": 6, "end": 7},
}[os.environ.get("STMAP", "")]


def st(k, nm):
    if nm in STMAP:
        k.stamp(STMAP[nm])


def signal(k, soff_reg):
    k.wait(vm=0, lg=0)
    k.i("s_barrier")
    _uid[0] += 1
    L = f"Lsig{_uid[0]}"
    k.i("s_cmp_lg_u32 s3, 4")
    k.i(f"s_cbranch_scc1 {L}")
    k.raw("    s_mov_b64 exec, 1")
    k.raw("    v_mov_b32 v1, 1")
    k.raw("    v_mov_b32 v10, 0")
    k.raw(f"    buffer_atomic_add v1, v10, s[44:47], s{soff_reg} offen sc1")
    k.raw("    s_mov_b64 exec, -1")
    k.label(L)


def wait_cnt(k, soff_regs, target):
    _uid[0] += 1
    L = f"Lw{_uid[0]}"
    k.i("s_cmp_lg_u32 s3, 4")
    k.i(f"s_cbranch_scc1 {L}_done")
    k.raw("    v_mov_b32 v10, 0")
    k.raw("    s_mov_b32 s35, 0")
    for n, so in enumerate(soff_regs):
        if os.environ.get("PPOLL"):
            k.raw("    s_waitcnt vmcnt(0)")
            k.raw("    v_mov_b32 v1, 0")
            for _ in range(3):
                k.raw(f"    buffer_load_dword v1, v10, s[44:47], s{so} offen sc1")
                k.raw("    s_sleep 3")
            k.label(f"{L}_{n}")
            k.raw(f"    buffer_load_dword v1, v10, s[44:47], s{so} offen sc1")
            k.raw("    s_add_u32 s35, s35, 1")
            k.raw("    s_waitcnt vmcnt(3)")
            k.raw("    v_readfirstlane_b32 s34, v1")
            k.raw("    s_cmp_gt_u32 s35, 0x80000")
            k.raw(f"    s_cbranch_scc1 {L}_done")
            k.raw(f"    s_cmp_lg_u32 s34, {target}")
            k.raw(f"    s_cbranch_scc1 {L}_{n}")
            continue
        k.label(f"{L}_{n}")
        k.raw(f"    buffer_load_dword v1, v10, s[44:47], s{so} offen sc1")
        k.raw("    s_add_u32 s35, s35, 1")
        k.raw("    s_waitcnt vmcnt(0)")
        k.raw("    v_readfirstlane_b32 s34, v1")
        k.raw("    s_cmp_gt_u32 s35, 0x80000")
        k.raw(f"    s_cbranch_scc1 {L}_done")
        k.raw(f"    s_cmp_lg_u32 s34, {target}")
        k.raw(f"    s_cbranch_scc1 {L}_{n}")
    k.label(f"{L}_done")
    k.i("s_barrier")


def poll_dbg(k, off, target, sreg=34, sleep=32):
    _uid[0] += 1
    L = f"Lpd{_uid[0]}"
    k.raw("    v_mov_b32 v10, 0")
    k.raw(f"    s_mov_b32 s{sreg+1}, 0")
    k.label(L)
    k.raw(f"    global_load_dword v1, v10, s[40:41] offset:{off} sc1")
    k.raw(f"    s_add_u32 s{sreg+1}, s{sreg+1}, 1")
    k.raw("    s_waitcnt vmcnt(0)")
    k.raw(f"    v_readfirstlane_b32 s{sreg}, v1")
    k.raw(f"    s_cmp_ge_u32 s{sreg}, {target}")
    k.raw(f"    s_cbranch_scc1 {L}_x")
    k.raw(f"    s_sleep {sleep}")
    k.raw(f"    s_cmp_lt_u32 s{sreg+1}, 0x80000")
    k.raw(f"    s_cbranch_scc1 {L}")
    k.label(f"{L}_x")


def peek_dbg(k, off, vreg):
    k.raw("    v_mov_b32 v10, 0")
    k.raw(f"    global_load_dword v{vreg}, v10, s[40:41] offset:{off} sc1")


def check_dbg(k, off, target, vreg, sleep=8):
    if os.environ.get("NOASYNC"):
        poll_dbg(k, off, target)
        return
    _uid[0] += 1
    L = f"Lck{_uid[0]}"
    k.raw("    s_nop 1")
    k.raw(f"    v_readfirstlane_b32 s34, v{vreg}")
    k.raw(f"    s_cmp_ge_u32 s34, {target}")
    k.raw(f"    s_cbranch_scc1 {L}")
    poll_dbg(k, off, target, sleep=sleep)
    k.label(L)


def wfrag(t, ks):
    if t == 0:
        return ar(4 * ks, 4)
    return ar(72 + 4 * ks, 4) if ks < 4 else vr(112 + 4 * (ks - 4), 4)


def small_wload_ops(wsoff, two, va=3, vb=4, first=0):
    g = [["s_add_u32 s37, s73, s3", "s_lshl_b32 s37, s37, 10", f"s_add_u32 s37, s37, {wsoff}"]]
    for ks in range(18):
        o = [f"buffer_load_dwordx4 {wfrag(first,ks)}, v{va}, s[44:47], s37 offen"]
        if two:
            o.append(f"buffer_load_dwordx4 {wfrag(1,ks)}, v{vb}, s[44:47], s37 offen")
        if ks < 17:
            o.append(f"s_add_u32 s37, s37, {SLAB}")
        g.append(o)
    return g


def small_wloads(k, wsoff, two, va=3, vb=4, first=0):
    for g in small_wload_ops(wsoff, two, va, vb, first):
        for o in g:
            k.i(o)


class Inter:
    def __init__(self, k, groups, every):
        self.k, self.groups, self.every, self.n = k, list(groups), every, 0

    def i(self, text):
        self.k.i(text)
        self.n += 1
        if self.groups and self.n % self.every == 0 and "exec" not in text and not text.startswith("s_cmp"):
            for o in self.groups.pop(0):
                self.k.i(o)

    def flush(self):
        for g in self.groups:
            for o in g:
                self.k.i(o)
        self.groups = []

    def __getattr__(self, a):
        return getattr(self.k, a)


def small_gemm(k, two, act_read, ACC, AF, refill=None, first=0):
    ntile = 2 if two else 1
    NB = 4
    for ks in range(NB - 1):
        for rt in range(2):
            act_read(AF + 8*(ks % NB) + 4*rt, rt, ks)
    for ks in range(18):
        if ks + NB - 1 < 18:
            for rt in range(2):
                act_read(AF + 8*((ks+NB-1) % NB) + 4*rt, rt, ks + NB - 1)
        for t in range(ntile):
            for rt in range(2):
                a = vr(ACC + 8*t + 4*rt, 4)
                k.i(f"v_mfma_f32_16x16x32_bf16 {a}, {wfrag(t+first,ks)}, {vr(AF+8*(ks%NB)+4*rt,4)}, {'0' if ks == 0 else a}")
        if refill:
            refill(ks)


def prefetch_lines(k, base_const, xmul, vdst):
    pass


def coop_prefetch(k, first, second, second_per_x, first_per_x):
    if os.environ.get("NOCOOP"):
        return
    _uid[0] += 1
    L = f"Lpf{_uid[0]}"
    k.i("s_cmp_ge_u32 s3, 6")
    k.i(f"s_cbranch_scc1 {L}")
    k.i("s_cmp_ge_u32 s3, 3")
    k.i(f"s_cselect_b32 s20, {second - first}, 0")
    k.i("s_cselect_b32 s21, 3, 0")
    k.i(f"s_add_u32 s20, s20, {first}")
    k.i("s_sub_u32 s21, s3, s21")
    k.i("s_mul_i32 s21, s21, 54")
    k.i("s_mul_i32 s22, s4, 162")
    k.i("s_add_u32 s21, s21, s22")
    k.i("s_lshl_b32 s21, s21, 7")
    k.i("s_add_u32 s20, s20, s21")
    if first_per_x:
        k.i(f"s_mul_i32 s21, s5, {CHUNK}")
        k.i("s_add_u32 s20, s20, s21")
    k.raw("    v_lshlrev_b32 v1, 7, v2")
    k.raw("    s_mov_b32 exec_hi, 0x3fffff")
    k.raw("    buffer_load_dword v1, v1, s[44:47], s20 offen")
    k.raw("    s_mov_b64 exec, -1")
    k.label(L)


def gen_kf(name):
    import kf0
    k = Kern()
    k.stamps = STAMPS
    k.raw(f".globl {name}\n.p2align 8\n.type {name},@function\n{name}:")
    k.i("s_cmp_ge_u32 s2, 256")
    k.i(f"s_cbranch_scc1 {name}_end")
    st(k, "start")
    k.i("s_load_dwordx16 s[16:31], s[0:1], 0")
    k.i("s_load_dwordx8 s[32:39], s[0:1], 64")
    k.i("s_load_dwordx4 s[40:43], s[0:1], 96")
    k.i("v_lshrrev_b32 v1, 6, v0")
    k.i("v_and_b32 v11, 63, v0")
    k.i("v_readfirstlane_b32 s3, v1")
    k.i("s_lshr_b32 s4, s2, 3")
    k.i("s_and_b32 s5, s2, 7")
    k.i("s_lshl_b32 s74, s5, 3")
    k.i("s_lshr_b32 s75, s4, 2")
    k.i("s_add_u32 s74, s74, s75")
    k.i("s_and_b32 s75, s4, 3")
    k.i("s_lshr_b32 s72, s75, 1")
    k.i("s_add_u32 s72, s72, 1")
    k.i("s_sub_u32 s73, 0, s72")
    k.i("s_bitcmp1_b32 s75, 0")
    k.i("s_cselect_b32 s72, s72, s73")
    k.i("s_lshl_b32 s73, s74, 5")
    k.i("s_add_u32 s72, s72, s73")
    k.i("s_mul_i32 s73, s75, 9")
    k.i("s_getpc_b64 s[6:7]")
    k.label("text_pc0")
    k.i("v_and_b32 v12, 127, v0")
    k.i("s_lshl_b32 s8, s4, 7")
    k.i("v_add_u32 v12, s8, v12")
    k.i("v_lshrrev_b32 v14, 1, v12")
    k.i("v_and_b32 v12, 1, v12")
    k.i("v_add_u32 v12, s5, v12")
    k.i("v_lshlrev_b32 v12, 7, v12")
    k.i("s_movk_i32 s8, 1152")
    k.i("v_mad_u32_u24 v12, v14, s8, v12")
    k.i("v_lshlrev_b32 v13, 7, v11")
    k.wait(lg=0)
    srd(k, 44, 42, 0, 0x10000000)
    k.i("s_cmp_ge_u32 s3, 4")
    k.i(f"s_cbranch_scc1 {name}_nopf")
    k.i("s_cmp_lt_u32 s3, 2")
    k.i("s_cselect_b64 s[8:9], s[18:19], s[20:21]")
    k.raw("    global_load_dword v166, v12, s[8:9]")
    k.raw("    global_load_dword v167, v13, s[6:7]")
    k.label(f"{name}_nopf")
    k.i("v_mov_b32 v111, 0")
    kf0.phase0(k, name, st, 56)
    st(k, "common")
    k.i("v_and_b32 v2, 63, v0")
    k.i("s_lshl_b32 s6, s5, 3")
    k.i("s_lshr_b32 s7, s4, 2")
    k.i("s_add_u32 s6, s6, s7")
    k.i("s_and_b32 s7, s4, 3")
    k.i("s_lshl_b32 s8, s6, 5")
    k.i("s_lshr_b32 s9, s7, 1")
    k.i("s_add_u32 s9, s9, 1")
    k.i("s_sub_u32 s10, 0, s9")
    k.i("s_bitcmp1_b32 s7, 0")
    k.i("s_cselect_b32 s9, s9, s10")
    k.i("s_add_u32 s10, s8, s9")
    k.i("s_lshl_b32 s11, s3, 2")
    k.i("s_add_u32 s11, s11, s10")
    k.i("v_and_b32 v5, 3, v2")
    k.i("v_lshrrev_b32 v6, 2, v2")
    k.i("v_add_u32 v7, s11, v5")
    k.i("v_lshlrev_b32 v3, 4, v2")
    k.i("v_add_u32 v4, 0x1000, v3")
    k.i("v_and_b32 v15, 15, v2")
    k.i("v_lshrrev_b32 v12, 4, v2")
    k.i("s_lshl_b32 s15, s3, 10")
    srd(k, 48, 16, 0, ACT)
    k.i("s_cmp_lt_u32 s4, 18")
    k.i(f"s_cbranch_scc1 {name}_xdone")
    k.i("s_mul_i32 s13, s10, 1152")
    k.i("s_add_u32 s13, s13, s15")
    k.i("v_add_u32 v8, s13, v3")
    k.i(f"s_add_u32 m0, s15, {XL}")
    for n in range(5):
        if n == 4:
            k.i("s_cmp_lt_u32 s3, 4")
            k.i("s_cselect_b32 s13, 8192, 0")
            k.i("v_add_u32 v8, s13, v8")
            k.i("s_add_u32 m0, m0, s13")
        elif n:
            k.i("v_add_u32 v8, 0x2000, v8")
            k.i("s_add_u32 m0, m0, 8192")
        k.i("buffer_load_dwordx4 v8, s[48:51], 0 offen lds")
    k.label(f"{name}_xdone")
    k.vmq = []
    srd(k, 52, 42, WS_Y2, ACT)
    srd(k, 56, 42, WS_ST, S * 16)
    srd(k, 68, 38, 0, ACT)
    k.i("s_ashr_i32 s12, s10, 4")
    k.i(f"s_mul_i32 s13, s12, {Y2_T}")
    k.i("s_add_u32 s13, s13, s15")
    k.i("v_add_u32 v13, s13, v3")
    k.i("s_lshl_b32 s13, s3, 2")
    k.i("v_add_u32 v8, s13, v5")
    k.i("v_mul_u32_u24 v8, 1152, v8")
    k.i("v_lshl_add_u32 v8, v6, 3, v8")
    k.i(f"v_add_u32 v8, {XL}, v8")
    k.i("v_ashrrev_i32 v9, 4, v7")
    k.i("v_subrev_u32 v9, s12, v9")
    k.i(f"v_mul_u32_u24 v9, {Y2_T}, v9")
    k.i("v_and_b32 v10, 15, v7")
    k.i("v_lshl_add_u32 v9, v10, 3, v9")
    k.i("v_lshl_add_u32 v9, v6, 7, v9")
    k.i("s_mul_i32 s14, s7, 9")
    k.i("s_add_u32 s14, s14, s3")
    k.i(f"s_mov_b32 s60, {f32(1.0/576)}")
    k.i(f"s_mov_b32 s61, {f32(1e-5)}")
    k.i(f"s_mov_b32 s62, {f32(-GELU_C0)}")
    k.i(f"v_mov_b32 v11, {f32(-GELU_C1)}")
    k.i("s_mov_b32 s63, 0x3f803f80")
    k.i("s_lshl_b32 s31, s6, 7")
    k.i(f"s_add_u32 s31, s31, {CNT_A}")
    k.i("s_lshr_b32 s32, s6, 1")
    k.i("s_lshl_b32 s32, s32, 7")
    k.i(f"s_add_u32 s32, s32, {CNT_B}")
    k.i("s_lshl_b32 s33, s4, 7")
    k.i(f"s_add_u32 s36, s33, {CNT_C}")
    k.i(f"s_add_u32 s33, s33, {CNT_B}")
    k.i("s_cmp_lg_u32 s3, 4")
    k.i(f"s_cbranch_scc1 {name}_ab1")
    sv = k.save()
    stage_a(k, True)
    stage_b(k, True)
    k.i(f"s_branch {name}_cb")
    k.restore(sv)
    k.label(f"{name}_ab1")
    stage_a(k, False)
    stage_b(k, False)
    k.i("s_cmp_ge_u32 s3, 4")
    k.i(f"s_cbranch_scc1 {name}_cb")
    k.label(f"{name}_ca")
    k.i("s_nop 4")
    sv = k.save()
    stage_c(k, True)
    k.i(f"s_branch {name}_d")
    k.restore(sv)
    k.label(f"{name}_cb")
    k.i("s_nop 4")
    stage_c(k, False)
    k.label(f"{name}_d")
    k.i("s_nop 4")
    stage_d(k, name)
    st(k, "end")
    k.stamp_flush(0, WS_STAMP)
    k.label(f"{name}_end")
    k.i("s_endpgm")
    return k


def sum_sq(k, regs, acc):
    for n, r in enumerate(regs):
        k.i(f"v_add_f32 v{acc[n & 1]}, v{acc[n & 1]}, v{r}")
        k.i(f"v_fmac_f32 v{acc[2 + (n & 1)]}, v{r}, v{r}")


def stage_a(k, two):
    XR, YR = 16, 34
    X, T = 52, 88
    vs, vq, vt, t0, vm1, vr1, vm2, vr2, t1, vm3, vr3, vs2, vq2 = 96, 97, 98, 99, 100, 101, 102, 103, 104, 105, 106, 107, 108
    acc = [vs, vs2, vq, vq2]

    def zero():
        for r in acc:
            k.i(f"v_mov_b32 v{r}, 0")

    def fin(m, r):
        k.i(f"v_add_f32 v{vs}, v{vs}, v{vs2}")
        k.i(f"v_add_f32 v{vq}, v{vq}, v{vq2}")
        reduce16_stride4(k, [vs, vq], [t0, t1])
        ln_finish(k, vs, vq, m, r, vt, 61, 60)
    import kf0
    tag = "t" if two else "o"
    if two:
        check_dbg(k, kf0.DBG_W12, 37, 111, sleep=16)
    k.wait(vm=0)
    k.i("s_barrier")
    small_wloads(k, WS_W1F, two)
    W2LATE = os.environ.get("W2LATE")
    if not two and not W2LATE:
        small_wloads(k, WS_W2F, False, first=1)
    st(k, "a_w12")
    if two:
        import kf0
        k.i("s_sub_u32 s20, s4, 18")
        k.i("s_cmp_ge_u32 s20, 9")
        k.i("s_cbranch_scc1 La_now34")
        kf0.dbg_add(k, kf0.DBG_W34)
        k.vmq = []
        k.label("La_now34")
    for i in range(9):
        k.i(f"ds_read_b64 {vr(XR+2*i,2)}, v8 offset:{128*i}")
    zero()
    for i in range(18):
        k.i(f"v_dot2c_f32_bf16 v{acc[i & 1]}, s63, v{XR+i}")
        k.i(f"v_dot2c_f32_bf16 v{acc[2 + (i & 1)]}, v{XR+i}, v{XR+i}")
        k.i(f"v_lshlrev_b32 v{X+2*i}, 16, v{XR+i}")
        k.i(f"v_and_b32 v{X+2*i+1}, 0xffff0000, v{XR+i}")
    fin(vm1, vr1)
    k.i("s_lshl_b32 s20, s4, 7")
    k.i(f"s_add_u32 s20, s20, {WS_FLAG + 128*128}")
    wait_cnt(k, [20], 1)
    st(k, "a_yw")
    k.i(f"s_add_u32 m0, s15, {YL}")
    for n in range(7):
        if n == 6:
            k.i("s_cmp_lt_u32 s3, 6")
            k.i("s_cselect_b32 s13, 8192, 0")
            k.i("v_add_u32 v13, s13, v13")
            k.i("s_add_u32 m0, m0, s13")
        elif n:
            k.i("v_add_u32 v13, 0x2000, v13")
            k.i("s_add_u32 m0, m0, 8192")
        k.i(f"buffer_load_dwordx4 v13, s[52:55], 0 offen{SC} lds")
    if two:
        peek_dbg(k, kf0.DBG_W34, 110)
    k.wait(vm=0)
    k.i("s_barrier")
    st(k, "a_y")
    for i in range(9):
        k.i(f"ds_read_b64 {vr(YR+2*i,2)}, v9 offset:{2048*i}")
    k0 = k
    if not two and W2LATE:
        k = Inter(k0, small_wload_ops(WS_W2F, False, first=1), 9)
    zero()
    for i in range(9):
        for h in range(2):
            k.i(f"v_lshlrev_b32 v{T+2*h}, 16, v{YR+2*i+h}")
            k.i(f"v_and_b32 v{T+2*h+1}, 0xffff0000, v{YR+2*i+h}")
        for e in range(4):
            k.i(f"v_fma_f32 v{T+4+e}, v{X+4*i+e}, v{vr1}, v{vt}")
        for e in range(4):
            k.i(f"v_fma_f32 v{X+4*i+e}, v{T+4+e}, v{T+e}, v{X+4*i+e}")
        sum_sq(k, [X+4*i+e for e in range(4)], acc)
    fin(vm2, vr2)
    k.i("v_lshlrev_b32 v13, 4, v7")
    k0.i("s_mov_b64 exec, 15")
    k0.i(f"buffer_store_dwordx4 {vr(vm1,4)}, v13, s[56:59], 0 offen{SC}")
    k0.i("s_mov_b64 exec, -1")
    k.i(f"v_mul_f32 v{vm3}, v{vr2}, v{vr2}")
    k.i(f"v_subrev_f32 v{vq}, s61, v{vq}")
    k.i(f"v_mul_f32 v{vm3}, v{vm3}, v{vq}")
    k.i(f"v_add_f32 v{vm3}, s61, v{vm3}")
    k.i(f"v_rsq_f32 v{vr3}, v{vm3}")
    k.i(f"v_mul_f32 v{vt}, v{vt}, v{vr3}")
    k.i(f"v_mul_f32 v{vr3}, v{vr3}, v{vr2}")
    k.i("s_lshl_b32 s15, s3, 2")
    k.i("v_add_u32 v13, s15, v5")
    k.i(f"v_mul_u32_u24 v13, {RS}, v13")
    k.i("v_lshl_add_u32 v13, v6, 3, v13")
    k.i(f"v_add_u32 v13, {AT}, v13")
    for i in range(9):
        for e in range(4):
            k.i(f"v_fma_f32 v{X+4*i+e}, v{X+4*i+e}, v{vr3}, v{vt}")
        k.i(f"v_cvt_pk_bf16_f32 v{XR+2*i}, v{X+4*i}, v{X+4*i+1}")
        k.i(f"v_cvt_pk_bf16_f32 v{XR+2*i+1}, v{X+4*i+2}, v{X+4*i+3}")
        k.i(f"ds_write_b64 v13, {vr(XR+2*i,2)} offset:{128*i}")
    if k is not k0:
        k.flush()
        k = k0
    k.i(f"v_mul_u32_u24 v14, {RS}, v15")
    k.i("v_lshl_add_u32 v14, v12, 4, v14")
    k.i(f"v_add_u32 v14, {AT}, v14")
    st(k, "a_ln")
    k.wait(lg=0)
    k.i("s_barrier")
    st(k, "a_bar")
    ACC, AF = 52, 68

    def act_read(reg, rt, ks):
        k.i(f"ds_read_b128 {vr(reg,4)}, v14 offset:{rt*16*RS + ks*64}")
    w2 = small_wload_ops(WS_W2F, two)
    for o in w2[0]:
        k.i(o)

    def refill(ks):
        for o in w2[1 + ks]:
            k.i(o)
    small_gemm(k, two, act_read, ACC, AF, refill if two else None)
    st(k, "a_gemm")
    nt = 2 if two else 1
    xs = [ACC + i for i in range(8 * nt)]
    tm = [16 + i for i in range(8 * nt)]
    k.i("v_add_u32 v13, s10, v15")
    k.i(f"s_movk_i32 s15, {S}")
    k.i("v_cmp_gt_u32 s[64:65], s15, v13")
    k.i("v_add_u32 v13, 16, v13")
    k.i("v_cmp_gt_u32 s[66:67], s15, v13")
    for o in gelu_ops(xs, tm, 11, 62):
        k.i(o)
    k.i("v_and_b32 v13, 1, v12")
    k.i(f"v_mul_u32_u24 v13, {18*1024}, v13")
    k.i("v_lshrrev_b32 v10, 1, v12")
    k.i("v_lshl_add_u32 v13, v10, 8, v13")
    k.i("v_lshl_add_u32 v13, v15, 4, v13")
    for t in range(nt):
        k.i(f"s_add_u32 s20, s14, {4*t}")
        k.i("s_lshr_b32 s21, s20, 1")
        k.i(f"s_mul_i32 s22, s6, {36}")
        k.i("s_add_u32 s21, s21, s22")
        k.i("s_lshl_b32 s21, s21, 10")
        k.i("s_and_b32 s20, s20, 1")
        k.i("s_lshl_b32 s20, s20, 9")
        k.i("s_add_u32 s21, s21, s20")
        k.i(f"s_add_u32 s21, s21, {WS_G}")
        p = 40 + 4*t
        for rt in range(2):
            b_ = 16 + 8*t + 4*rt
            k.i(f"v_cvt_pk_bf16_f32 v{p+2*rt}, v{b_}, v{b_+1}")
            k.i(f"v_cvt_pk_bf16_f32 v{p+2*rt+1}, v{b_+2}, v{b_+3}")
            k.i(f"v_cndmask_b32 v{p+2*rt}, 0, v{p+2*rt}, s[{64+2*rt}:{65+2*rt}]")
            k.i(f"v_cndmask_b32 v{p+2*rt+1}, 0, v{p+2*rt+1}, s[{64+2*rt}:{65+2*rt}]")
        k.i(f"v_permlane16_swap_b32 v{p}, v{p+2}")
        k.i(f"v_permlane16_swap_b32 v{p+1}, v{p+3}")
        k.i(f"buffer_store_dwordx4 {vr(p,4)}, v13, s[44:47], s21 offen{SC}")
    if two:
        check_dbg(k, kf0.DBG_W34, 72, 110)
    signal(k, 31)
    st(k, "a_end")


def stage_b(k, two):
    nt = 2 if two else 1
    k.i(f"s_mul_i32 s28, s5, {CHUNK}")
    k.i(f"s_add_u32 s28, s28, {WS_W3F}")
    k.i("s_lshl_b32 s29, s3, 10")
    k.i("s_add_u32 s29, s29, s28")
    k.i("s_add_u32 s29, s29, 8192")
    k.i("s_lshl_b32 s30, s3, 11")
    k.i("s_add_u32 s28, s28, s30")
    k.i("s_cmp_ge_u32 s3, 4")
    k.i("s_cselect_b32 s30, 4096, 0")
    k.i("s_add_u32 s28, s28, s30")

    def ring(n):
        cb = (n // 2) * SLAB + 1024 * (n % 2)
        if two:
            k.i(f"s_add_u32 s30, s28, {cb}")
        else:
            sl = n % 3
            ca = (n // 3) * SLAB + (1024 * sl if sl < 2 else 0)
            k.i(f"s_add_u32 s30, s{28 if sl < 2 else 29}, {ca}")
            k.i(f"s_add_u32 s37, s28, {cb}")
            k.i("s_cmp_lt_u32 s3, 4")
            k.i("s_cselect_b32 s30, s30, s37")
        k.i(f"buffer_load_dwordx4 {ar(4*n,4)}, v3, s[44:47], s30 offen")

    if not two:
        coop_prefetch(k, WS_W3F, WS_W4F, True, True)
        for n in range(18):
            ring(n)
    k.i("v_add_u32 v5, s8, v15")
    k.i("v_lshlrev_b32 v7, 4, v5")
    k.i("s_movk_i32 s12, 1152")
    k.i("v_mul_lo_u32 v5, v5, s12")
    k.i("v_lshl_add_u32 v5, v12, 3, v5")
    k.i("s_lshl_b32 s12, s14, 5")
    k.i("v_add_u32 v5, s12, v5")
    k.i("v_lshlrev_b32 v6, 7, v12")
    k.i("v_lshl_add_u32 v6, v15, 3, v6")
    k.i("s_lshl_b32 s12, s14, 9")
    k.i("v_add_u32 v6, s12, v6")
    k.i(f"s_mul_i32 s12, s6, {2*Y2_T}")
    k.i(f"s_add_u32 s13, s12, {Y2_T}")
    k.i("s_add_u32 s22, s12, 2048")
    k.i("s_add_u32 s23, s13, 2048")
    k.i(f"s_movk_i32 s15, {16*1152}")
    XR, YR, STR, GS = 16, 24, 32, 40
    for t in range(nt):
        for rt in range(2):
            k.i(f"buffer_load_dwordx2 {vr(XR+4*t+2*rt,2)}, v5, s[48:51], {'s15' if rt else '0'} offen offset:{128*t}")
            k.i(f"buffer_load_dwordx2 {vr(YR+4*t+2*rt,2)}, v6, s[52:55], s{(22 if t else 12) + rt} offen{SC}")
    k.i(f"s_mul_i32 s20, s6, {36*1024}")
    k.i(f"s_add_u32 s20, s20, {WS_G}")
    k.i("s_lshl_b32 s21, s3, 10")
    k.i("s_add_u32 s20, s20, s21")
    k.i(f"s_add_u32 s21, s21, {GT_OFF}")
    k.i("v_add_u32 v13, s21, v3")
    k.i(f"v_add_u32 v14, {GT_OFF}, v3")
    wait_cnt(k, [31], 4)
    st(k, "b_wait")
    for n in range(4):
        k.i(f"buffer_load_dwordx4 {vr(GS+4*n,4)}, v3, s[44:47], s20 offen{SC}")
        k.i("s_add_u32 s20, s20, 8192")
    k.i("s_sub_u32 s21, s20, 8192")
    k.i("s_cmp_lt_u32 s3, 4")
    k.i("s_cselect_b32 s20, s20, s21")
    k.i(f"buffer_load_dwordx4 {vr(GS+16,4)}, v3, s[44:47], s20 offen{SC}")
    for rt in range(2):
        k.i(f"buffer_load_dwordx4 {vr(STR+4*rt,4)}, v7, s[56:59], 0 offen offset:{256*rt}{SC}")
    if two:
        coop_prefetch(k, WS_W3F, WS_W4F, True, True)
    for n in range(4):
        k.i(f"ds_write_b128 v13, {vr(GS+4*n,4)} offset:{8192*n}")
    k.i("s_cmp_lt_u32 s3, 4")
    k.i("s_cselect_b32 s21, 8192, 0")
    k.i("v_add_u32 v13, s21, v13")
    k.i(f"ds_write_b128 v13, {vr(GS+16,4)} offset:{8192*3}")
    k.wait(lg=0)
    k.i("s_barrier")
    st(k, "b_g")
    ACC, AF = 60, 76

    def act_read(reg, rt, ks):
        k.i(f"ds_read_b128 {vr(reg,4)}, v14 offset:{(rt*18+ks)*1024}")
    def refill(ks):
        if two:
            ring(ks)
        if ks == 17:
            for n in range(18, NRING):
                ring(n)
    small_gemm(k, two, act_read, ACC, AF, refill, first=0 if two else 1)
    st(k, "b_gemm")
    k.i("v_and_b32 v13, 1, v12")
    k.i(f"v_mul_u32_u24 v13, {18*1024}, v13")
    k.i("v_lshrrev_b32 v10, 1, v12")
    k.i("v_lshl_add_u32 v13, v10, 8, v13")
    k.i("v_lshl_add_u32 v13, v15, 4, v13")
    k.i("s_lshr_b32 s21, s14, 1")
    k.i(f"s_mul_i32 s22, s6, {36}")
    k.i("s_add_u32 s21, s21, s22")
    k.i("s_lshl_b32 s21, s21, 10")
    k.i("s_and_b32 s20, s14, 1")
    k.i("s_lshl_b32 s20, s20, 9")
    k.i("s_add_u32 s21, s21, s20")
    k.i(f"s_add_u32 s24, s21, {WS_H}")
    k.i(f"s_add_u32 s25, s21, {WS_H + 2048}")
    k.i(f"s_add_u32 s26, s21, {WS_X1}")
    k.i(f"s_add_u32 s27, s21, {WS_X1 + 2048}")
    for rt in range(2):
        st_ = STR + 4*rt
        k.i(f"v_mul_f32 v{st_}, v{st_}, v{st_+1}")
        k.i(f"v_mul_f32 v{st_+2}, v{st_+2}, v{st_+3}")
    for t in range(nt):
        PH, PX = 100 + 0, 104
        if t:
            PH, PX = 40, 44
        for rt in range(2):
            T = 76 + 12 * rt
            st_ = STR + 4*rt
            xr, yr = XR + 4*t + 2*rt, YR + 4*t + 2*rt
            a = ACC + 8*t + 4*rt
            x, y, u = T, T + 4, T + 8
            for h in range(2):
                k.i(f"v_lshlrev_b32 v{x+2*h}, 16, v{xr+h}")
                k.i(f"v_and_b32 v{x+2*h+1}, 0xffff0000, v{xr+h}")
                k.i(f"v_lshlrev_b32 v{y+2*h}, 16, v{yr+h}")
                k.i(f"v_and_b32 v{y+2*h+1}, 0xffff0000, v{yr+h}")
            for e in range(4):
                k.i(f"v_fma_f32 v{u+e}, v{x+e}, v{st_+1}, -v{st_}")
            for e in range(4):
                k.i(f"v_fma_f32 v{x+e}, v{u+e}, v{y+e}, v{x+e}")
            for e in range(4):
                k.i(f"v_fma_f32 v{u+e}, v{x+e}, v{st_+3}, -v{st_+2}")
            for e in range(4):
                k.i(f"v_add_f32 v{u+e}, v{u+e}, v{a+e}")
            k.i(f"v_cvt_pk_bf16_f32 v{PH+2*rt}, v{x}, v{x+1}")
            k.i(f"v_cvt_pk_bf16_f32 v{PH+2*rt+1}, v{x+2}, v{x+3}")
            k.i(f"v_cvt_pk_bf16_f32 v{PX+2*rt}, v{u}, v{u+1}")
            k.i(f"v_cvt_pk_bf16_f32 v{PX+2*rt+1}, v{u+2}, v{u+3}")
        for P in (PX, PH):
            k.i(f"v_permlane16_swap_b32 v{P}, v{P+2}")
            k.i(f"v_permlane16_swap_b32 v{P+1}, v{P+3}")
        k.i(f"buffer_store_dwordx4 {vr(PX,4)}, v13, s[44:47], s{26+t} offen{SC}")
        k.i(f"buffer_store_dwordx4 {vr(PH,4)}, v13, s[44:47], s{24+t} offen{SC}")
        SS = 76 + 4*t
        k.i(f"v_mov_b32 v{SS}, 0")
        k.i(f"v_mov_b32 v{SS+1}, 0")
        for e in range(4):
            k.i(f"v_dot2c_f32_bf16 v{SS}, s63, v{PX+e}")
            k.i(f"v_dot2c_f32_bf16 v{SS+1}, v{PX+e}, v{PX+e}")
        k.i(f"v_mov_b32 v{SS+2}, v{SS}")
        k.i(f"v_mov_b32 v{SS+3}, v{SS+1}")
        k.i(f"v_permlane32_swap_b32 v{SS}, v{SS+2}")
        k.i(f"v_permlane32_swap_b32 v{SS+1}, v{SS+3}")
        k.i(f"v_add_f32 v{SS}, v{SS}, v{SS+2}")
        k.i(f"v_add_f32 v{SS+1}, v{SS+1}, v{SS+3}")
        if t == 0:
            k.i("v_lshrrev_b32 v10, 1, v3")
            k.i("s_mul_i32 s20, s6, 36")
            k.i("s_add_u32 s20, s20, s14")
            k.i("s_lshl_b32 s20, s20, 8")
            k.i(f"s_add_u32 s20, s20, {WS_ST2}")
        k.i("s_mov_b32 exec_hi, 0")
        k.i(f"buffer_store_dwordx2 {vr(SS,2)}, v10, s[44:47], s20 offen offset:{1024*t}{SC}")
        k.i("s_mov_b32 exec_hi, -1")
    st(k, "b_st")
    signal(k, 32)
    st(k, "b_end")


def stage_c(k, isA):
    XR = 16
    k.i("s_lshl_b32 s8, s4, 6")
    k.i(f"s_mul_i32 s13, s5, {CHUNK}")
    k.i(f"s_add_u32 s14, s13, {WS_W3F}")
    k.i(f"s_add_u32 s15, s13, {WS_W4F}")
    if isA:
        k.i("s_lshl_b32 s20, s3, 11")
        k.i("v_add_u32 v4, s20, v3")
        k.i("s_lshl_b32 s20, s3, 10")
        k.i("s_add_u32 s21, s20, 8192")
        k.i("v_add_u32 v8, s21, v3")
        k.i("s_add_u32 s21, s20, 16384")
        k.i("v_add_u32 v0, s21, v3")
        k.i("s_lshl_b32 s20, s3, 12")
        k.i("v_add_u32 v2, s20, v3")
    else:
        k.i("s_lshl_b32 s20, s3, 11")
        k.i("s_add_u32 s20, s20, 4096")
        k.i("v_add_u32 v4, s20, v3")
        k.i("s_lshl_b32 s20, s3, 12")
        k.i("s_add_u32 s20, s20, 4096")
        k.i("v_add_u32 v2, s20, v3")
    k.i("s_lshl_b32 s20, s3, 11")
    k.i(f"s_add_u32 s20, s20, {20*1024}")
    k.i("v_add_u32 v13, s20, v3")
    p0 = [(4, 0), (4, 1024)] + ([(8, 0)] if isA else [])
    p1 = [(13, 0), (13, 1024)]
    p2a = [(2, 0), (2, 1024)] + ([(0, 0)] if isA else [])
    p2b = [(2, 2048), (2, 3072)]
    stream = []
    for ks in range(18):
        stream += [(14, ks, v, o) for v, o in p0]
    for ks in range(18):
        stream += [(14, ks, v, o) for v, o in p1]
    for ks in range(10):
        stream += [(15, ks, v, o) for v, o in p2a + p2b]
    SEG4 = os.environ.get("SEG4", "6")
    if SEG4 in "245":
        for ks in range(10, 18):
            stream += [(15, ks, v, o) for v, o in p2a + p2b]
    else:
        for ks in range(10, 18):
            stream += [(15, ks, v, o) for v, o in p2a]
        for ks in range(10, 18):
            stream += [(15, ks, v, o) for v, o in p2b]
    state = {"next": 0, "cur": None}

    def issue_w():
        n = state["next"]
        if n >= len(stream):
            return
        sb, ks, v, o = stream[n]
        if state["cur"] != (sb, ks):
            k.i(f"s_add_u32 s24, s{sb}, {ks*SLAB}")
            state["cur"] = (sb, ks)
        k.i(f"buffer_load_dwordx4 {ar(4*(n % NRING),4)}, v{v}, s[44:47], s24 offen offset:{o}")
        state["next"] = n + 1

    state["next"] = NRING
    k.i("s_lshl_b32 s9, s3, 3")
    k.i("v_lshrrev_b32 v5, 7, v3")
    k.i("v_add_u32 v5, s9, v5")
    k.i("v_and_b32 v6, 0x70, v3")
    k.i(f"v_mul_u32_u24 v7, {RS}, v5")
    k.i("v_add_u32 v7, v7, v6")
    k.i("v_and_b32 v5, 15, v5")
    k.i("v_lshlrev_b32 v5, 4, v5")
    k.i("v_lshl_add_u32 v5, v6, 4, v5")
    k.i("s_lshr_b32 s12, s3, 1")
    k.i("s_lshl_b32 s20, s4, 2")
    k.i("s_add_u32 s12, s12, s20")
    k.i(f"s_mul_i32 s12, s12, {18*1024}")
    k.i(f"s_add_u32 s12, s12, {WS_X1}")
    k.i("v_lshrrev_b32 v9, 7, v3")
    k.i("v_add_u32 v9, s9, v9")
    k.i("v_and_b32 v9, 31, v9")
    k.i("v_lshlrev_b32 v9, 3, v9")
    k.i("v_lshl_add_u32 v9, v6, 4, v9")
    k.i("v_cmp_gt_u32 vcc, 64, v6")
    k.i("v_mov_b32 v14, 0x7ff00000")
    k.i("v_cndmask_b32 v14, v14, v9, vcc")
    k.i("s_lshr_b32 s20, s3, 2")
    k.i("s_lshl_b32 s21, s4, 1")
    k.i("s_add_u32 s20, s20, s21")
    k.i(f"s_mul_i32 s20, s20, {36*256}")
    k.i(f"s_add_u32 s20, s20, {WS_ST2}")
    wait_cnt(k, [33], 8)
    st(k, "c_wait")
    XR, SR2, TT = 64, 100, 110
    for i in range(5):
        k.i(f"buffer_load_dwordx2 {vr(SR2+2*i,2)}, v{9 if i < 4 else 14}, s[44:47], s20 offen offset:{2048*(i&1)}{SC}")
        if i & 1:
            k.i("s_add_u32 s20, s20, 4096")
    k.i("v_mov_b32 v125, v5")

    def x1_load(i):
        k.i(f"buffer_load_dwordx4 {vr(XR+4*i,4)}, v125, s[44:47], s12 offen offset:{2048*(i&1)}{SC}")
        if i & 1:
            k.i("s_add_u32 s12, s12, 4096")
    for i in range(3):
        x1_load(i)
    k.i("v_mov_b32 v1, v7")
    vs, vq, vm, vrs, vt = SR2, SR2 + 1, SR2 + 2, 126, 127

    def norm_ops(i):
        T = TT
        ops = []
        for e in range(4):
            ops.append(f"v_lshlrev_b32 v{T+2*e}, 16, v{XR+4*i+e}")
            ops.append(f"v_and_b32 v{T+2*e+1}, 0xffff0000, v{XR+4*i+e}")
        for e in range(8):
            ops.append(f"v_fma_f32 v{T+e}, v{T+e}, v{vrs}, v{vt}")
        for e in range(4):
            ops.append(f"v_cvt_pk_bf16_f32 v{XR+4*i+e}, v{T+2*e}, v{T+2*e+1}")
        ops.append(f"ds_write_b128 v1, {vr(XR+4*i,4)} offset:{128*i}")
        return ops
    k.i(f"v_mul_u32_u24 v14, {RS}, v15")
    k.i("v_lshl_add_u32 v14, v12, 4, v14")
    k.i(f"v_add_u32 v5, {A_BYTES}, v3")
    k.i(f"v_add_u32 v6, {A_BYTES + 36864}, v3")
    k.i("s_lshl_b32 s20, s3, 12")
    if not isA:
        k.i("s_add_u32 s20, s20, 8192")
    k.i("v_add_u32 v7, s20, v5")
    if isA:
        k.i("s_lshr_b32 s20, s3, 1")
        k.i("s_lshl_b32 s20, s20, 12")
        k.i("s_and_b32 s21, s3, 1")
        k.i("s_lshl_b32 s21, s21, 3")
        k.i("s_add_u32 s20, s20, s21")
        k.i(f"s_add_u32 s20, s20, {4*4096}")
        k.i("v_add_u32 v9, s20, v5")
    k.i("s_lshl_b32 s20, s3, 12")
    k.i(f"s_add_u32 s20, s20, {10*4096}")
    k.i("v_add_u32 v10, s20, v5")
    k.i(f"s_mul_i32 s26, s5, {ACT}")
    k.i(f"s_add_u32 s26, s26, {WS_P}")
    k.i(f"s_mul_i32 s27, s4, {4*18*1024}")
    k.i("s_add_u32 s26, s26, s27")
    if isA:
        k.i("s_lshl_b32 s27, s3, 11")
        k.i("s_add_u32 s28, s26, s27")
        k.i("s_lshr_b32 s27, s3, 1")
        k.i("s_lshl_b32 s27, s27, 10")
        k.i("s_add_u32 s29, s26, s27")
        k.i("s_and_b32 s27, s3, 1")
        k.i("s_lshl_b32 s27, s27, 3")
        k.i("s_add_u32 s29, s29, s27")
        k.i("s_add_u32 s29, s29, 8192")
    else:
        k.i("s_lshl_b32 s27, s3, 11")
        k.i("s_add_u32 s28, s26, s27")
        k.i("s_add_u32 s28, s28, 2048")
    for i in range(1, 5):
        k.i(f"v_add_f32 v{vs}, v{vs}, v{SR2+2*i}")
        k.i(f"v_add_f32 v{vq}, v{vq}, v{SR2+2*i+1}")
    st(k, "c_x1")
    for i in range(3, 6):
        x1_load(i)
    reduce8(k, [vs, vq])
    ln_finish(k, vs, vq, vm, vrs, vt, 61, 60)
    for i in range(3):
        for o in norm_ops(i):
            k.i(o)
    for i in range(6, 9):
        x1_load(i)
    k.wait(lg=0)
    k.i("s_barrier")
    st(k, "c_main")

    ACC0, ACC1, ACC2, AF, TM = 16, 64, 96, 128, 160
    n0 = len(p0)
    wn = {"i": 0}

    def run_seg(ksl, tiles_acc, act_addr, first_zero, filler, per):
        def rd(i, buf):
            for rt in range(4):
                v, o = act_addr(ksl[i], rt)
                yield f"ds_read_b128 {vr(AF+16*buf+4*rt,4)}, v{v} offset:{o}"
        for o in rd(0, 0):
            k.i(o)
        credit = 0.0
        for i, ks in enumerate(ksl):
            nxt = list(rd(i + 1, (i + 1) & 1)) if i + 1 < len(ksl) else []
            for t, ab in enumerate(tiles_acc):
                slot = wn["i"] % NRING
                for rt in range(4):
                    a = vr(ab + 4*rt, 4)
                    c = "0" if (first_zero and i == 0) else a
                    k.i(f"v_mfma_f32_16x16x32_bf16 {a}, {ar(4*slot,4)}, {vr(AF+16*(i&1)+4*rt,4)}, {c}")
                    if nxt and (t > 0 or rt > 0):
                        k.i(nxt.pop(0))
                    credit += per
                    while filler and credit >= 1.0:
                        k.i(filler.pop(0))
                        credit -= 1.0
                wn["i"] += 1
                issue_w()
            for o in nxt:
                k.i(o)
        for o in filler:
            k.i(o)

    def gelu_pack_write(accs, waddr_pair, waddr_single):
        ops = []
        for rt in range(4):
            xs = [accs[0] + 4*rt + e for e in range(4)] + [accs[1] + 4*rt + e for e in range(4)]
            tm = [TM + e for e in range(8)]
            ops += gelu_ops(xs, tm, 11, 62)
            d = accs[0] + 4*rt
            for e in range(4):
                ops.append(f"v_cvt_pk_bf16_f32 v{d+e}, v{TM+2*e}, v{TM+2*e+1}")
            ops.append(f"ds_write_b128 v{waddr_pair}, {vr(d,4)} offset:{rt*1024}")
        if len(accs) > 2:
            for rp in range(2):
                xs = [accs[2] + 8*rp + e for e in range(8)]
                tm = [TM + e for e in range(8)]
                ops += gelu_ops(xs, tm, 11, 62)
                d = accs[2] + 8*rp
                for e in range(4):
                    ops.append(f"v_cvt_pk_bf16_f32 v{d+e}, v{TM+2*e}, v{TM+2*e+1}")
                ops.append(f"ds_write_b64 v{waddr_single}, {vr(d,2)} offset:{(2*rp)*1024}")
                ops.append(f"ds_write_b64 v{waddr_single}, {vr(d+2,2)} offset:{(2*rp+1)*1024}")
        return ops

    def a_addr(ks, rt):
        return (14, rt*16*RS + ks*64)

    def h_addr(ks, rt):
        o = (ks*4 + rt) * 1024
        return (5, o) if o < 36864 else (6, o - 36864)

    def store_ops(accs, sreg_pair, pair_imm, sreg_single):
        ops = []
        for rt in range(4):
            d = TM + 4*(rt & 1)
            for h in range(2):
                a = accs[h] + 4*rt
                ops.append(f"v_cvt_pk_bf16_f32 v{d+2*h}, v{a}, v{a+1}")
                ops.append(f"v_cvt_pk_bf16_f32 v{d+2*h+1}, v{a+2}, v{a+3}")
            ops.append(f"s_add_u32 s30, s{sreg_pair}, {rt*18*1024}")
            ops.append(f"buffer_store_dwordx4 {vr(d,4)}, v3, s[44:47], s30 offen offset:{pair_imm}{SC}")
        if len(accs) > 2:
            for rt in range(4):
                a = accs[2] + 4*rt
                ops.append(f"v_cvt_pk_bf16_f32 v{a}, v{a}, v{a+1}")
                ops.append(f"v_cvt_pk_bf16_f32 v{a+1}, v{a+2}, v{a+3}")
                ops.append(f"s_add_u32 s30, s{sreg_single}, {rt*18*1024}")
                ops.append(f"buffer_store_dwordx2 {vr(a,2)}, v3, s[44:47], s30 offen{SC}")
        return ops

    t0 = [ACC0 + 16*t for t in range(n0)]
    t1 = [ACC1, ACC1 + 16]
    t2a = t0
    t2b = [ACC2, ACC2 + 16]
    if os.environ.get("PRIOB") and not isA:
        k.i("s_setprio 1")
    if os.environ.get("PRIOA") and isA:
        k.i("s_setprio 1")
    for c in range(3):
        f = sum((norm_ops(i) for i in range(3*c + 3, 3*c + 6)), []) if c < 2 else []
        run_seg(list(range(6*c, 6*c + 6)), t0, a_addr, c == 0, f, len(f) / (6*4*n0 - 12.0))
        if c < 2:
            k.wait(lg=0)
            k.i("s_barrier")
    st(k, "c_s1")
    f = gelu_pack_write(t0, 7, 9)
    run_seg(list(range(18)), t1, a_addr, True, f, len(f) / (18*8 - float(os.environ.get("SL2", "24"))))
    k.wait(lg=0)
    k.i("s_barrier")
    st(k, "c_s2")
    f = gelu_pack_write(t1, 10, None)
    run_seg(list(range(10)), t2a + t2b, h_addr, True, f, len(f) / (10*4*(n0+2) - float(os.environ.get("SL3", "40"))))
    k.wait(lg=0)
    k.i("s_barrier")
    st(k, "c_s3")
    if SEG4 == "2":
        run_seg(list(range(10, 18)), t2a + t2b, h_addr, False, [], 0)
        st(k, "c_s4")
        for o in store_ops(t2a, 28, 0, 29) + store_ops(t2b, 28, 1024, None):
            k.i(o)
    elif SEG4 in "45":
        if SEG4 == "5" and not isA:
            k.i("s_setprio 1")
            run_seg(list(range(10, 15)), t2a + t2b, h_addr, False, [], 0)
            k.i("s_setprio 0")
            run_seg(list(range(15, 18)), t2a + t2b, h_addr, False, [], 0)
        else:
            run_seg(list(range(10, 18)), t2a + t2b, h_addr, False, [], 0)
        st(k, "c_s4")
        k.i("s_barrier")
        for o in store_ops(t2a, 28, 0, 29) + store_ops(t2b, 28, 1024, None):
            k.i(o)
    elif SEG4 == "6":
        run_seg(list(range(10, 18)), t2a, h_addr, False, [], 0)
        f = store_ops(t2a[:2], 28, 0, None)
        if isA:
            sa = t2a[2]
            k.i("s_lshr_b32 s20, s3, 1")
            k.i("s_lshl_b32 s20, s20, 12")
            k.i("s_and_b32 s21, s3, 1")
            k.i("s_lshl_b32 s22, s21, 3")
            k.i("s_add_u32 s22, s22, s20")
            k.i("v_add_u32 v9, s22, v3")
            k.i("s_lshl_b32 s22, s21, 11")
            k.i("s_add_u32 s22, s22, s20")
            k.i("v_add_u32 v7, s22, v3")
            for rt in range(4):
                a = sa + 4*rt
                k.i(f"v_cvt_pk_bf16_f32 v{a}, v{a}, v{a+1}")
                k.i(f"v_cvt_pk_bf16_f32 v{a+1}, v{a+2}, v{a+3}")
                k.i(f"ds_write_b64 v9, {vr(a,2)} offset:{1024*rt}")
            k.i(f"s_mul_i32 s22, s21, {2*18*1024 - 8}")
            k.i("s_add_u32 s29, s29, s22")
            k.wait(lg=0)
            for n in range(2):
                f.append(f"ds_read_b128 {vr(sa+4*n,4)}, v7 offset:{1024*n}")
            for n in range(2):
                f.append(f"s_add_u32 s30, s29, {n*18*1024}")
                f.append(f"buffer_store_dwordx4 {vr(sa+4*n,4)}, v3, s[44:47], s30 offen{SC}")
        k.i("s_barrier")
        run_seg(list(range(10, 18)), t2b, h_addr, False, f, len(f) / (8*8 - 16.0))
        st(k, "c_s4")
        for o in store_ops(t2b, 28, 1024, None):
            k.i(o)
    elif SEG4 == "3":
        run_seg(list(range(10, 18)), t2a, h_addr, False, [], 0)
        run_seg(list(range(10, 18)), t2b, h_addr, False, [], 0)
        st(k, "c_s4")
        for o in store_ops(t2a, 28, 0, 29) + store_ops(t2b, 28, 1024, None):
            k.i(o)
    else:
        run_seg(list(range(10, 18)), t2a, h_addr, False, [], 0)
        f = store_ops(t2a, 28, 0, 29)
        run_seg(list(range(10, 18)), t2b, h_addr, False, f, len(f) / (8*8 - 16.0))
        st(k, "c_s4")
        for o in store_ops(t2b, 28, 1024, None):
            k.i(o)
    signal(k, 36)
    st(k, "c_end")


def stage_d(k, name):
    k.i("s_mul_i32 s6, s4, 72")
    k.i("s_mul_i32 s7, s5, 9")
    k.i("s_add_u32 s6, s6, s7")
    k.i("s_add_u32 s6, s6, s3")
    k.i("v_lshrrev_b32 v5, 1, v12")
    k.i("v_lshl_add_u32 v5, v5, 4, v15")
    k.i("v_lshlrev_b32 v5, 4, v5")
    k.i("v_and_b32 v6, 1, v12")
    k.i("v_lshl_add_u32 v5, v6, 3, v5")

    def addr(su, vout, sp, B):
        k.i(f"s_mul_hi_u32 s7, s{su}, 0x0e38e38f")
        k.i("s_mul_i32 s8, s7, 18")
        k.i(f"s_sub_u32 s8, s{su}, s8")
        k.i("s_lshl_b32 s9, s7, 4")
        k.i(f"v_add_u32 v{vout}, s9, v15")
        k.i(f"v_mul_u32_u24 v{vout}, 1152, v{vout}")
        k.i(f"v_lshl_add_u32 v{vout}, v12, 3, v{vout}")
        k.i("s_lshl_b32 s9, s8, 6")
        k.i(f"v_add_u32 v{vout}, s9, v{vout}")
        k.i(f"s_lshl_b32 s{sp}, s{su}, 10")
        k.i(f"s_add_u32 s9, s{sp}, {WS_H}")
        k.i(f"s_add_u32 s10, s{sp}, {WS_X1}")
        for h in range(2):
            k.i(f"buffer_load_dwordx2 {vr(B+32+2*h,2)}, v5, s[44:47], s9 offen offset:{512*h}{SC}")
            k.i(f"buffer_load_dwordx2 {vr(B+36+2*h,2)}, v5, s[44:47], s10 offen offset:{512*h}{SC}")
        k.i(f"s_add_u32 s{sp}, s{sp}, {WS_P}")

    def loads(sp, B):
        for p in range(8):
            k.i(f"buffer_load_dwordx4 {vr(B+4*p,4)}, v3, s[44:47], s{sp} offen{SC}")
            if p < 7:
                k.i(f"s_add_u32 s{sp}, s{sp}, {ACT}")

    def finish(vout, B):
        A = B + 40
        for n, p in enumerate([8, 9] + list(range(8))):
            src = B + 4*p
            for e in range(4):
                if n == 0:
                    k.i(f"v_lshlrev_b32 v{A+2*e}, 16, v{src+e}")
                    k.i(f"v_and_b32 v{A+2*e+1}, 0xffff0000, v{src+e}")
                else:
                    k.i(f"v_lshlrev_b32 v6, 16, v{src+e}")
                    k.i(f"v_and_b32 v7, 0xffff0000, v{src+e}")
                    k.i(f"v_add_f32 v{A+2*e}, v{A+2*e}, v6")
                    k.i(f"v_add_f32 v{A+2*e+1}, v{A+2*e+1}, v7")
        for e in range(4):
            k.i(f"v_cvt_pk_bf16_f32 v{A+8+e}, v{A+2*e}, v{A+2*e+1}")
        for h in range(2):
            k.i(f"buffer_store_dwordx2 {vr(A+8+2*h,2)}, v{vout}, s[68:71], 0 offen offset:{32*h}")
    addr(6, 4, 12, 16)
    k.i("s_cmp_lg_u32 s3, 0")
    k.i(f"s_cbranch_scc1 {name}_d1")
    sv = k.save()
    k.i("s_add_u32 s11, s6, 8")
    addr(11, 8, 13, 72)
    wait_cnt(k, [36], 8)
    st(k, "d_wait")
    loads(12, 16)
    loads(13, 72)
    finish(4, 16)
    finish(8, 72)
    k.i(f"s_branch {name}_ddone")
    k.restore(sv)
    k.label(f"{name}_d1")
    wait_cnt(k, [36], 8)
    st(k, "d_wait")
    loads(12, 16)
    finish(4, 16)
    k.label(f"{name}_ddone")


def kernels():
    import kf0
    return [(NAME + "_kernel", gen_kf(NAME + "_kernel"), 256, 512, max(KM_LDS, kf0.P0_LDS), 256, 96, ACCUM)]
```

```python
import sys, os
sys.path.insert(0, os.path.dirname(os.path.abspath(__file__)))
from dsl import *
from common import *

def build(which=None):
    ref = open(f"cdna_kernels/{NAME}.s.ref").read().splitlines()
    head = [l for l in ref if l.startswith(";") and "@launch" not in l and "Override launch" not in l and "grid=ceil" not in l]
    kernels = []
    import km
    kernels += km.kernels()
    if which:
        kernels = kernels[:which]
    out = list(head)
    for (n, k, g, b, l, *_) in kernels:
        if len(kernels) == 1:
            out.append(f"; @launch grid=({g},1,1) block=({b},1,1) lds={l}")
        else:
            out.append(f"; @launch kernel={n} grid=({g},1,1) block=({b},1,1) lds={l}")
    out.append('.amdgcn_target "amdgcn-amd-amdhsa--gfx950"')
    out.append(".text")
    for (n, k, *_) in kernels:
        out.append(k.text())
    out.append("text_end:")
    out.append("    s_endpgm")
    out.append('.section .rodata,"a"')
    for (n, k, g, b, l, vg, sg, ac) in kernels:
        out.append(".p2align 6")
        out.append(kd(n, vg, sg, ac))
    return "\n".join(out) + "\n"

if __name__ == "__main__":
    which = int(sys.argv[2]) if len(sys.argv) > 2 else None
    dst = sys.argv[1] if len(sys.argv) > 1 else f"cdna_kernels/{NAME}.s"
    open(dst, "w").write(build(which))
    print("wrote", dst)
```

```python
import struct, os
from dsl import *
from common import *
from k2345 import f32, srd, gelu_ops, reduce16_stride4, reduce8, ln_finish, RS, GELU_C0, GELU_C1

A_BYTES = 64 * RS
H_BYTES = 18 * 4 * 1024
KM_LDS = A_BYTES + H_BYTES
ACCUM = 168
NRING = (256 - ACCUM) // 4
GT_OFF = 94208
XL = 94208
YL = 0
AT = 55296
CNT_A = WS_FLAG
CNT_B = WS_FLAG + 64 * 128
CNT_C = WS_FLAG + 96 * 128
SC = " sc1"
POLL_SLEEP = int(os.environ.get("POLL_SLEEP", "4"))
_uid = [0]


STMAP = {
    "": {"start": 0, "a_x": 1, "a_end": 2, "b_wait": 3, "b_end": 4, "c_wait": 5, "c_main": 6, "end": 7},
    "P": {"start": 0, "p_kc": 1, "p_q0": 2, "p_q1": 3, "p_q2": 4, "p_q3": 5, "p_mf": 6, "common": 7,
          "l_q0": 2, "l_q1": 3, "l_q2": 4, "l_q3": 5, "r_iss": 1, "r_ld": 2},
    "F": {"start": 0, "common": 1, "a_yw": 2, "a_end": 3, "b_end": 4, "c_main": 5, "c_end": 6, "end": 7},
    "A2": {"common": 0, "a_w12": 1, "a_yw": 2, "a_y": 3, "a_ln": 4, "a_bar": 5, "a_gemm": 6, "a_end": 7},
    "A": {"start": 0, "a_issued": 1, "a_x": 2, "a_wissued": 3, "a_ln": 4, "a_bar": 5, "a_gemm": 6, "a_end": 7},
    "B": {"a_end": 0, "b_wait": 1, "b_g": 2, "b_gemm": 3, "b_st": 4, "b_end": 5, "c_wait": 6, "c_x1": 7},
    "C": {"c_main": 0, "c_s1": 1, "c_s2": 2, "c_s3": 3, "c_s4": 4, "c_end": 5, "d_wait": 6, "end": 7},
}[os.environ.get("STMAP", "")]


def st(k, nm):
    if nm in STMAP:
        k.stamp(STMAP[nm])


def signal(k, soff_reg):
    k.wait(vm=0, lg=0)
    k.i("s_barrier")
    _uid[0] += 1
    L = f"Lsig{_uid[0]}"
    k.i("s_cmp_lg_u32 s3, 4")
    k.i(f"s_cbranch_scc1 {L}")
    k.raw("    s_mov_b64 exec, 1")
    k.raw("    v_mov_b32 v1, 1")
    k.raw("    v_mov_b32 v10, 0")
    k.raw(f"    buffer_atomic_add v1, v10, s[44:47], s{soff_reg} offen sc1")
    k.raw("    s_mov_b64 exec, -1")
    k.label(L)


def wait_cnt(k, soff_regs, target):
    _uid[0] += 1
    L = f"Lw{_uid[0]}"
    k.i("s_cmp_lg_u32 s3, 4")
    k.i(f"s_cbranch_scc1 {L}_done")
    k.raw("    v_mov_b32 v10, 0")
    k.raw("    s_mov_b32 s35, 0")
    for n, so in enumerate(soff_regs):
        if os.environ.get("PPOLL"):
            k.raw("    s_waitcnt vmcnt(0)")
            k.raw("    v_mov_b32 v1, 0")
            for _ in range(3):
                k.raw(f"    buffer_load_dword v1, v10, s[44:47], s{so} offen sc1")
                k.raw("    s_sleep 3")
            k.label(f"{L}_{n}")
            k.raw(f"    buffer_load_dword v1, v10, s[44:47], s{so} offen sc1")
            k.raw("    s_add_u32 s35, s35, 1")
            k.raw("    s_waitcnt vmcnt(3)")
            k.raw("    v_readfirstlane_b32 s34, v1")
            k.raw("    s_cmp_gt_u32 s35, 0x80000")
            k.raw(f"    s_cbranch_scc1 {L}_done")
            k.raw(f"    s_cmp_lg_u32 s34, {target}")
            k.raw(f"    s_cbranch_scc1 {L}_{n}")
            continue
        k.label(f"{L}_{n}")
        k.raw(f"    buffer_load_dword v1, v10, s[44:47], s{so} offen sc1")
        k.raw("    s_add_u32 s35, s35, 1")
        k.raw("    s_waitcnt vmcnt(0)")
        k.raw("    v_readfirstlane_b32 s34, v1")
        k.raw("    s_cmp_gt_u32 s35, 0x80000")
        k.raw(f"    s_cbranch_scc1 {L}_done")
        k.raw(f"    s_cmp_lg_u32 s34, {target}")
        k.raw(f"    s_cbranch_scc1 {L}_{n}")
    k.label(f"{L}_done")
    k.i("s_barrier")


def poll_dbg(k, off, target, sreg=34, sleep=32):
    _uid[0] += 1
    L = f"Lpd{_uid[0]}"
    k.raw("    v_mov_b32 v10, 0")
    k.raw(f"    s_mov_b32 s{sreg+1}, 0")
    k.label(L)
    k.raw(f"    global_load_dword v1, v10, s[40:41] offset:{off} sc1")
    k.raw(f"    s_add_u32 s{sreg+1}, s{sreg+1}, 1")
    k.raw("    s_waitcnt vmcnt(0)")
    k.raw(f"    v_readfirstlane_b32 s{sreg}, v1")
    k.raw(f"    s_cmp_ge_u32 s{sreg}, {target}")
    k.raw(f"    s_cbranch_scc1 {L}_x")
    k.raw(f"    s_sleep {sleep}")
    k.raw(f"    s_cmp_lt_u32 s{sreg+1}, 0x80000")
    k.raw(f"    s_cbranch_scc1 {L}")
    k.label(f"{L}_x")


def peek_dbg(k, off, vreg):
    k.raw("    v_mov_b32 v10, 0")
    k.raw(f"    global_load_dword v{vreg}, v10, s[40:41] offset:{off} sc1")


def check_dbg(k, off, target, vreg, sleep=8):
    if os.environ.get("NOASYNC"):
        poll_dbg(k, off, target)
        return
    _uid[0] += 1
    L = f"Lck{_uid[0]}"
    k.raw("    s_nop 1")
    k.raw(f"    v_readfirstlane_b32 s34, v{vreg}")
    k.raw(f"    s_cmp_ge_u32 s34, {target}")
    k.raw(f"    s_cbranch_scc1 {L}")
    poll_dbg(k, off, target, sleep=sleep)
    k.label(L)


def wfrag(t, ks):
    if t == 0:
        return ar(4 * ks, 4)
    return ar(72 + 4 * ks, 4) if ks < 4 else vr(112 + 4 * (ks - 4), 4)


def small_wload_ops(wsoff, two, va=3, vb=4, first=0):
    g = [["s_add_u32 s37, s73, s3", "s_lshl_b32 s37, s37, 10", f"s_add_u32 s37, s37, {wsoff}"]]
    for ks in range(18):
        o = [f"buffer_load_dwordx4 {wfrag(first,ks)}, v{va}, s[44:47], s37 offen"]
        if two:
            o.append(f"buffer_load_dwordx4 {wfrag(1,ks)}, v{vb}, s[44:47], s37 offen")
        if ks < 17:
            o.append(f"s_add_u32 s37, s37, {SLAB}")
        g.append(o)
    return g


def small_wloads(k, wsoff, two, va=3, vb=4, first=0):
    for g in small_wload_ops(wsoff, two, va, vb, first):
        for o in g:
            k.i(o)


class Inter:
    def __init__(self, k, groups, every):
        self.k, self.groups, self.every, self.n = k, list(groups), every, 0

    def i(self, text):
        self.k.i(text)
        self.n += 1
        if self.groups and self.n % self.every == 0 and "exec" not in text and not text.startswith("s_cmp"):
            for o in self.groups.pop(0):
                self.k.i(o)

    def flush(self):
        for g in self.groups:
            for o in g:
                self.k.i(o)
        self.groups = []

    def __getattr__(self, a):
        return getattr(self.k, a)


def small_gemm(k, two, act_read, ACC, AF, refill=None, first=0):
    ntile = 2 if two else 1
    NB = 4
    for ks in range(NB - 1):
        for rt in range(2):
            act_read(AF + 8*(ks % NB) + 4*rt, rt, ks)
    for ks in range(18):
        if ks + NB - 1 < 18:
            for rt in range(2):
                act_read(AF + 8*((ks+NB-1) % NB) + 4*rt, rt, ks + NB - 1)
        for t in range(ntile):
            for rt in range(2):
                a = vr(ACC + 8*t + 4*rt, 4)
                k.i(f"v_mfma_f32_16x16x32_bf16 {a}, {wfrag(t+first,ks)}, {vr(AF+8*(ks%NB)+4*rt,4)}, {'0' if ks == 0 else a}")
        if refill:
            refill(ks)


def prefetch_lines(k, base_const, xmul, vdst):
    pass


def coop_prefetch(k, first, second, second_per_x, first_per_x):
    if os.environ.get("NOCOOP"):
        return
    _uid[0] += 1
    L = f"Lpf{_uid[0]}"
    k.i("s_cmp_ge_u32 s3, 6")
    k.i(f"s_cbranch_scc1 {L}")
    k.i("s_cmp_ge_u32 s3, 3")
    k.i(f"s_cselect_b32 s20, {second - first}, 0")
    k.i("s_cselect_b32 s21, 3, 0")
    k.i(f"s_add_u32 s20, s20, {first}")
    k.i("s_sub_u32 s21, s3, s21")
    k.i("s_mul_i32 s21, s21, 54")
    k.i("s_mul_i32 s22, s4, 162")
    k.i("s_add_u32 s21, s21, s22")
    k.i("s_lshl_b32 s21, s21, 7")
    k.i("s_add_u32 s20, s20, s21")
    if first_per_x:
        k.i(f"s_mul_i32 s21, s5, {CHUNK}")
        k.i("s_add_u32 s20, s20, s21")
    k.raw("    v_lshlrev_b32 v1, 7, v2")
    k.raw("    s_mov_b32 exec_hi, 0x3fffff")
    k.raw("    buffer_load_dword v1, v1, s[44:47], s20 offen")
    k.raw("    s_mov_b64 exec, -1")
    k.label(L)


def gen_kf(name):
    import kf0
    k = Kern()
    k.stamps = STAMPS
    k.raw(f".globl {name}\n.p2align 8\n.type {name},@function\n{name}:")
    k.i("s_cmp_ge_u32 s2, 256")
    k.i(f"s_cbranch_scc1 {name}_end")
    st(k, "start")
    k.i("s_load_dwordx16 s[16:31], s[0:1], 0")
    k.i("s_load_dwordx8 s[32:39], s[0:1], 64")
    k.i("s_load_dwordx4 s[40:43], s[0:1], 96")
    k.i("v_lshrrev_b32 v1, 6, v0")
    k.i("v_and_b32 v11, 63, v0")
    k.i("v_readfirstlane_b32 s3, v1")
    k.i("s_lshr_b32 s4, s2, 3")
    k.i("s_and_b32 s5, s2, 7")
    k.i("s_lshl_b32 s74, s5, 3")
    k.i("s_lshr_b32 s75, s4, 2")
    k.i("s_add_u32 s74, s74, s75")
    k.i("s_and_b32 s75, s4, 3")
    k.i("s_lshr_b32 s72, s75, 1")
    k.i("s_add_u32 s72, s72, 1")
    k.i("s_sub_u32 s73, 0, s72")
    k.i("s_bitcmp1_b32 s75, 0")
    k.i("s_cselect_b32 s72, s72, s73")
    k.i("s_lshl_b32 s73, s74, 5")
    k.i("s_add_u32 s72, s72, s73")
    k.i("s_mul_i32 s73, s75, 9")
    k.i("s_getpc_b64 s[6:7]")
    k.label("text_pc0")
    k.i("v_and_b32 v12, 127, v0")
    k.i("s_lshl_b32 s8, s4, 7")
    k.i("v_add_u32 v12, s8, v12")
    k.i("v_lshrrev_b32 v14, 1, v12")
    k.i("v_and_b32 v12, 1, v12")
    k.i("v_add_u32 v12, s5, v12")
    k.i("v_lshlrev_b32 v12, 7, v12")
    k.i("s_movk_i32 s8, 1152")
    k.i("v_mad_u32_u24 v12, v14, s8, v12")
    k.i("v_lshlrev_b32 v13, 7, v11")
    k.wait(lg=0)
    srd(k, 44, 42, 0, 0x10000000)
    k.i("s_cmp_ge_u32 s3, 4")
    k.i(f"s_cbranch_scc1 {name}_nopf")
    k.i("s_cmp_lt_u32 s3, 2")
    k.i("s_cselect_b64 s[8:9], s[18:19], s[20:21]")
    k.raw("    global_load_dword v166, v12, s[8:9]")
    k.raw("    global_load_dword v167, v13, s[6:7]")
    k.label(f"{name}_nopf")
    k.i("v_mov_b32 v111, 0")
    kf0.phase0(k, name, st, 56)
    st(k, "common")
    k.i("v_and_b32 v2, 63, v0")
    k.i("s_lshl_b32 s6, s5, 3")
    k.i("s_lshr_b32 s7, s4, 2")
    k.i("s_add_u32 s6, s6, s7")
    k.i("s_and_b32 s7, s4, 3")
    k.i("s_lshl_b32 s8, s6, 5")
    k.i("s_lshr_b32 s9, s7, 1")
    k.i("s_add_u32 s9, s9, 1")
    k.i("s_sub_u32 s10, 0, s9")
    k.i("s_bitcmp1_b32 s7, 0")
    k.i("s_cselect_b32 s9, s9, s10")
    k.i("s_add_u32 s10, s8, s9")
    k.i("s_lshl_b32 s11, s3, 2")
    k.i("s_add_u32 s11, s11, s10")
    k.i("v_and_b32 v5, 3, v2")
    k.i("v_lshrrev_b32 v6, 2, v2")
    k.i("v_add_u32 v7, s11, v5")
    k.i("v_lshlrev_b32 v3, 4, v2")
    k.i("v_add_u32 v4, 0x1000, v3")
    k.i("v_and_b32 v15, 15, v2")
    k.i("v_lshrrev_b32 v12, 4, v2")
    k.i("s_lshl_b32 s15, s3, 10")
    srd(k, 48, 16, 0, ACT)
    k.i("s_cmp_lt_u32 s4, 18")
    k.i(f"s_cbranch_scc1 {name}_xdone")
    k.i("s_mul_i32 s13, s10, 1152")
    k.i("s_add_u32 s13, s13, s15")
    k.i("v_add_u32 v8, s13, v3")
    k.i(f"s_add_u32 m0, s15, {XL}")
    for n in range(5):
        if n == 4:
            k.i("s_cmp_lt_u32 s3, 4")
            k.i("s_cselect_b32 s13, 8192, 0")
            k.i("v_add_u32 v8, s13, v8")
            k.i("s_add_u32 m0, m0, s13")
        elif n:
            k.i("v_add_u32 v8, 0x2000, v8")
            k.i("s_add_u32 m0, m0, 8192")
        k.i("buffer_load_dwordx4 v8, s[48:51], 0 offen lds")
    k.label(f"{name}_xdone")
    k.vmq = []
    srd(k, 52, 42, WS_Y2, ACT)
    srd(k, 56, 42, WS_ST, S * 16)
    srd(k, 68, 38, 0, ACT)
    k.i("s_ashr_i32 s12, s10, 4")
    k.i(f"s_mul_i32 s13, s12, {Y2_T}")
    k.i("s_add_u32 s13, s13, s15")
    k.i("v_add_u32 v13, s13, v3")
    k.i("s_lshl_b32 s13, s3, 2")
    k.i("v_add_u32 v8, s13, v5")
    k.i("v_mul_u32_u24 v8, 1152, v8")
    k.i("v_lshl_add_u32 v8, v6, 3, v8")
    k.i(f"v_add_u32 v8, {XL}, v8")
    k.i("v_ashrrev_i32 v9, 4, v7")
    k.i("v_subrev_u32 v9, s12, v9")
    k.i(f"v_mul_u32_u24 v9, {Y2_T}, v9")
    k.i("v_and_b32 v10, 15, v7")
    k.i("v_lshl_add_u32 v9, v10, 3, v9")
    k.i("v_lshl_add_u32 v9, v6, 7, v9")
    k.i("s_mul_i32 s14, s7, 9")
    k.i("s_add_u32 s14, s14, s3")
    k.i(f"s_mov_b32 s60, {f32(1.0/576)}")
    k.i(f"s_mov_b32 s61, {f32(1e-5)}")
    k.i(f"s_mov_b32 s62, {f32(-GELU_C0)}")
    k.i(f"v_mov_b32 v11, {f32(-GELU_C1)}")
    k.i("s_mov_b32 s63, 0x3f803f80")
    k.i("s_lshl_b32 s31, s6, 7")
    k.i(f"s_add_u32 s31, s31, {CNT_A}")
    k.i("s_lshr_b32 s32, s6, 1")
    k.i("s_lshl_b32 s32, s32, 7")
    k.i(f"s_add_u32 s32, s32, {CNT_B}")
    k.i("s_lshl_b32 s33, s4, 7")
    k.i(f"s_add_u32 s36, s33, {CNT_C}")
    k.i(f"s_add_u32 s33, s33, {CNT_B}")
    k.i("s_cmp_lg_u32 s3, 4")
    k.i(f"s_cbranch_scc1 {name}_ab1")
    sv = k.save()
    stage_a(k, True)
    stage_b(k, True)
    k.i(f"s_branch {name}_cb")
    k.restore(sv)
    k.label(f"{name}_ab1")
    stage_a(k, False)
    stage_b(k, False)
    k.i("s_cmp_ge_u32 s3, 4")
    k.i(f"s_cbranch_scc1 {name}_cb")
    k.label(f"{name}_ca")
    k.i("s_nop 4")
    sv = k.save()
    stage_c(k, True)
    k.i(f"s_branch {name}_d")
    k.restore(sv)
    k.label(f"{name}_cb")
    k.i("s_nop 4")
    stage_c(k, False)
    k.label(f"{name}_d")
    k.i("s_nop 4")
    stage_d(k, name)
    st(k, "end")
    k.stamp_flush(0, WS_STAMP)
    k.label(f"{name}_end")
    k.i("s_endpgm")
    return k


def sum_sq(k, regs, acc):
    for n, r in enumerate(regs):
        k.i(f"v_add_f32 v{acc[n & 1]}, v{acc[n & 1]}, v{r}")
        k.i(f"v_fmac_f32 v{acc[2 + (n & 1)]}, v{r}, v{r}")


def stage_a(k, two):
    XR, YR = 16, 34
    X, T = 52, 88
    vs, vq, vt, t0, vm1, vr1, vm2, vr2, t1, vm3, vr3, vs2, vq2 = 96, 97, 98, 99, 100, 101, 102, 103, 104, 105, 106, 107, 108
    acc = [vs, vs2, vq, vq2]

    def zero():
        for r in acc:
            k.i(f"v_mov_b32 v{r}, 0")

    def fin(m, r):
        k.i(f"v_add_f32 v{vs}, v{vs}, v{vs2}")
        k.i(f"v_add_f32 v{vq}, v{vq}, v{vq2}")
        reduce16_stride4(k, [vs, vq], [t0, t1])
        ln_finish(k, vs, vq, m, r, vt, 61, 60)
    import kf0
    tag = "t" if two else "o"
    if two:
        check_dbg(k, kf0.DBG_W12, 37, 111, sleep=16)
    k.wait(vm=0)
    k.i("s_barrier")
    small_wloads(k, WS_W1F, two)
    W2LATE = os.environ.get("W2LATE")
    if not two and not W2LATE:
        small_wloads(k, WS_W2F, False, first=1)
    st(k, "a_w12")
    if two:
        import kf0
        k.i("s_sub_u32 s20, s4, 18")
        k.i("s_cmp_ge_u32 s20, 9")
        k.i("s_cbranch_scc1 La_now34")
        kf0.dbg_add(k, kf0.DBG_W34)
        k.vmq = []
        k.label("La_now34")
    for i in range(9):
        k.i(f"ds_read_b64 {vr(XR+2*i,2)}, v8 offset:{128*i}")
    zero()
    for i in range(18):
        k.i(f"v_dot2c_f32_bf16 v{acc[i & 1]}, s63, v{XR+i}")
        k.i(f"v_dot2c_f32_bf16 v{acc[2 + (i & 1)]}, v{XR+i}, v{XR+i}")
        k.i(f"v_lshlrev_b32 v{X+2*i}, 16, v{XR+i}")
        k.i(f"v_and_b32 v{X+2*i+1}, 0xffff0000, v{XR+i}")
    fin(vm1, vr1)
    k.i("s_lshl_b32 s20, s4, 7")
    k.i(f"s_add_u32 s20, s20, {WS_FLAG + 128*128}")
    wait_cnt(k, [20], 1)
    st(k, "a_yw")
    k.i(f"s_add_u32 m0, s15, {YL}")
    for n in range(7):
        if n == 6:
            k.i("s_cmp_lt_u32 s3, 6")
            k.i("s_cselect_b32 s13, 8192, 0")
            k.i("v_add_u32 v13, s13, v13")
            k.i("s_add_u32 m0, m0, s13")
        elif n:
            k.i("v_add_u32 v13, 0x2000, v13")
            k.i("s_add_u32 m0, m0, 8192")
        k.i(f"buffer_load_dwordx4 v13, s[52:55], 0 offen{SC} lds")
    if two:
        peek_dbg(k, kf0.DBG_W34, 110)
    k.wait(vm=0)
    k.i("s_barrier")
    st(k, "a_y")
    for i in range(9):
        k.i(f"ds_read_b64 {vr(YR+2*i,2)}, v9 offset:{2048*i}")
    k0 = k
    if not two and W2LATE:
        k = Inter(k0, small_wload_ops(WS_W2F, False, first=1), 9)
    zero()
    for i in range(9):
        for h in range(2):
            k.i(f"v_lshlrev_b32 v{T+2*h}, 16, v{YR+2*i+h}")
            k.i(f"v_and_b32 v{T+2*h+1}, 0xffff0000, v{YR+2*i+h}")
        for e in range(4):
            k.i(f"v_fma_f32 v{T+4+e}, v{X+4*i+e}, v{vr1}, v{vt}")
        for e in range(4):
            k.i(f"v_fma_f32 v{X+4*i+e}, v{T+4+e}, v{T+e}, v{X+4*i+e}")
        sum_sq(k, [X+4*i+e for e in range(4)], acc)
    fin(vm2, vr2)
    k.i("v_lshlrev_b32 v13, 4, v7")
    k0.i("s_mov_b64 exec, 15")
    k0.i(f"buffer_store_dwordx4 {vr(vm1,4)}, v13, s[56:59], 0 offen{SC}")
    k0.i("s_mov_b64 exec, -1")
    k.i(f"v_mul_f32 v{vm3}, v{vr2}, v{vr2}")
    k.i(f"v_subrev_f32 v{vq}, s61, v{vq}")
    k.i(f"v_mul_f32 v{vm3}, v{vm3}, v{vq}")
    k.i(f"v_add_f32 v{vm3}, s61, v{vm3}")
    k.i(f"v_rsq_f32 v{vr3}, v{vm3}")
    k.i(f"v_mul_f32 v{vt}, v{vt}, v{vr3}")
    k.i(f"v_mul_f32 v{vr3}, v{vr3}, v{vr2}")
    k.i("s_lshl_b32 s15, s3, 2")
    k.i("v_add_u32 v13, s15, v5")
    k.i(f"v_mul_u32_u24 v13, {RS}, v13")
    k.i("v_lshl_add_u32 v13, v6, 3, v13")
    k.i(f"v_add_u32 v13, {AT}, v13")
    for i in range(9):
        for e in range(4):
            k.i(f"v_fma_f32 v{X+4*i+e}, v{X+4*i+e}, v{vr3}, v{vt}")
        k.i(f"v_cvt_pk_bf16_f32 v{XR+2*i}, v{X+4*i}, v{X+4*i+1}")
        k.i(f"v_cvt_pk_bf16_f32 v{XR+2*i+1}, v{X+4*i+2}, v{X+4*i+3}")
        k.i(f"ds_write_b64 v13, {vr(XR+2*i,2)} offset:{128*i}")
    if k is not k0:
        k.flush()
        k = k0
    k.i(f"v_mul_u32_u24 v14, {RS}, v15")
    k.i("v_lshl_add_u32 v14, v12, 4, v14")
    k.i(f"v_add_u32 v14, {AT}, v14")
    st(k, "a_ln")
    k.wait(lg=0)
    k.i("s_barrier")
    st(k, "a_bar")
    ACC, AF = 52, 68

    def act_read(reg, rt, ks):
        k.i(f"ds_read_b128 {vr(reg,4)}, v14 offset:{rt*16*RS + ks*64}")
    w2 = small_wload_ops(WS_W2F, two)
    for o in w2[0]:
        k.i(o)

    def refill(ks):
        for o in w2[1 + ks]:
            k.i(o)
    small_gemm(k, two, act_read, ACC, AF, refill if two else None)
    st(k, "a_gemm")
    nt = 2 if two else 1
    xs = [ACC + i for i in range(8 * nt)]
    tm = [16 + i for i in range(8 * nt)]
    k.i("v_add_u32 v13, s10, v15")
    k.i(f"s_movk_i32 s15, {S}")
    k.i("v_cmp_gt_u32 s[64:65], s15, v13")
    k.i("v_add_u32 v13, 16, v13")
    k.i("v_cmp_gt_u32 s[66:67], s15, v13")
    for o in gelu_ops(xs, tm, 11, 62):
        k.i(o)
    k.i("v_and_b32 v13, 1, v12")
    k.i(f"v_mul_u32_u24 v13, {18*1024}, v13")
    k.i("v_lshrrev_b32 v10, 1, v12")
    k.i("v_lshl_add_u32 v13, v10, 8, v13")
    k.i("v_lshl_add_u32 v13, v15, 4, v13")
    for t in range(nt):
        k.i(f"s_add_u32 s20, s14, {4*t}")
        k.i("s_lshr_b32 s21, s20, 1")
        k.i(f"s_mul_i32 s22, s6, {36}")
        k.i("s_add_u32 s21, s21, s22")
        k.i("s_lshl_b32 s21, s21, 10")
        k.i("s_and_b32 s20, s20, 1")
        k.i("s_lshl_b32 s20, s20, 9")
        k.i("s_add_u32 s21, s21, s20")
        k.i(f"s_add_u32 s21, s21, {WS_G}")
        p = 40 + 4*t
        for rt in range(2):
            b_ = 16 + 8*t + 4*rt
            k.i(f"v_cvt_pk_bf16_f32 v{p+2*rt}, v{b_}, v{b_+1}")
            k.i(f"v_cvt_pk_bf16_f32 v{p+2*rt+1}, v{b_+2}, v{b_+3}")
            k.i(f"v_cndmask_b32 v{p+2*rt}, 0, v{p+2*rt}, s[{64+2*rt}:{65+2*rt}]")
            k.i(f"v_cndmask_b32 v{p+2*rt+1}, 0, v{p+2*rt+1}, s[{64+2*rt}:{65+2*rt}]")
        k.i(f"v_permlane16_swap_b32 v{p}, v{p+2}")
        k.i(f"v_permlane16_swap_b32 v{p+1}, v{p+3}")
        k.i(f"buffer_store_dwordx4 {vr(p,4)}, v13, s[44:47], s21 offen{SC}")
    if two:
        check_dbg(k, kf0.DBG_W34, 72, 110)
    signal(k, 31)
    st(k, "a_end")


def stage_b(k, two):
    nt = 2 if two else 1
    k.i(f"s_mul_i32 s28, s5, {CHUNK}")
    k.i(f"s_add_u32 s28, s28, {WS_W3F}")
    k.i("s_lshl_b32 s29, s3, 10")
    k.i("s_add_u32 s29, s29, s28")
    k.i("s_add_u32 s29, s29, 8192")
    k.i("s_lshl_b32 s30, s3, 11")
    k.i("s_add_u32 s28, s28, s30")
    k.i("s_cmp_ge_u32 s3, 4")
    k.i("s_cselect_b32 s30, 4096, 0")
    k.i("s_add_u32 s28, s28, s30")

    def ring(n):
        cb = (n // 2) * SLAB + 1024 * (n % 2)
        if two:
            k.i(f"s_add_u32 s30, s28, {cb}")
        else:
            sl = n % 3
            ca = (n // 3) * SLAB + (1024 * sl if sl < 2 else 0)
            k.i(f"s_add_u32 s30, s{28 if sl < 2 else 29}, {ca}")
            k.i(f"s_add_u32 s37, s28, {cb}")
            k.i("s_cmp_lt_u32 s3, 4")
            k.i("s_cselect_b32 s30, s30, s37")
        k.i(f"buffer_load_dwordx4 {ar(4*n,4)}, v3, s[44:47], s30 offen")

    if not two:
        coop_prefetch(k, WS_W3F, WS_W4F, True, True)
        for n in range(18):
            ring(n)
    k.i("v_add_u32 v5, s8, v15")
    k.i("v_lshlrev_b32 v7, 4, v5")
    k.i("s_movk_i32 s12, 1152")
    k.i("v_mul_lo_u32 v5, v5, s12")
    k.i("v_lshl_add_u32 v5, v12, 3, v5")
    k.i("s_lshl_b32 s12, s14, 5")
    k.i("v_add_u32 v5, s12, v5")
    k.i("v_lshlrev_b32 v6, 7, v12")
    k.i("v_lshl_add_u32 v6, v15, 3, v6")
    k.i("s_lshl_b32 s12, s14, 9")
    k.i("v_add_u32 v6, s12, v6")
    k.i(f"s_mul_i32 s12, s6, {2*Y2_T}")
    k.i(f"s_add_u32 s13, s12, {Y2_T}")
    k.i("s_add_u32 s22, s12, 2048")
    k.i("s_add_u32 s23, s13, 2048")
    k.i(f"s_movk_i32 s15, {16*1152}")
    XR, YR, STR, GS = 16, 24, 32, 40
    for t in range(nt):
        for rt in range(2):
            k.i(f"buffer_load_dwordx2 {vr(XR+4*t+2*rt,2)}, v5, s[48:51], {'s15' if rt else '0'} offen offset:{128*t}")
            k.i(f"buffer_load_dwordx2 {vr(YR+4*t+2*rt,2)}, v6, s[52:55], s{(22 if t else 12) + rt} offen{SC}")
    k.i(f"s_mul_i32 s20, s6, {36*1024}")
    k.i(f"s_add_u32 s20, s20, {WS_G}")
    k.i("s_lshl_b32 s21, s3, 10")
    k.i("s_add_u32 s20, s20, s21")
    k.i(f"s_add_u32 s21, s21, {GT_OFF}")
    k.i("v_add_u32 v13, s21, v3")
    k.i(f"v_add_u32 v14, {GT_OFF}, v3")
    wait_cnt(k, [31], 4)
    st(k, "b_wait")
    for n in range(4):
        k.i(f"buffer_load_dwordx4 {vr(GS+4*n,4)}, v3, s[44:47], s20 offen{SC}")
        k.i("s_add_u32 s20, s20, 8192")
    k.i("s_sub_u32 s21, s20, 8192")
    k.i("s_cmp_lt_u32 s3, 4")
    k.i("s_cselect_b32 s20, s20, s21")
    k.i(f"buffer_load_dwordx4 {vr(GS+16,4)}, v3, s[44:47], s20 offen{SC}")
    for rt in range(2):
        k.i(f"buffer_load_dwordx4 {vr(STR+4*rt,4)}, v7, s[56:59], 0 offen offset:{256*rt}{SC}")
    if two:
        coop_prefetch(k, WS_W3F, WS_W4F, True, True)
    for n in range(4):
        k.i(f"ds_write_b128 v13, {vr(GS+4*n,4)} offset:{8192*n}")
    k.i("s_cmp_lt_u32 s3, 4")
    k.i("s_cselect_b32 s21, 8192, 0")
    k.i("v_add_u32 v13, s21, v13")
    k.i(f"ds_write_b128 v13, {vr(GS+16,4)} offset:{8192*3}")
    k.wait(lg=0)
    k.i("s_barrier")
    st(k, "b_g")
    ACC, AF = 60, 76

    def act_read(reg, rt, ks):
        k.i(f"ds_read_b128 {vr(reg,4)}, v14 offset:{(rt*18+ks)*1024}")
    def refill(ks):
        if two:
            ring(ks)
        if ks == 17:
            for n in range(18, NRING):
                ring(n)
    small_gemm(k, two, act_read, ACC, AF, refill, first=0 if two else 1)
    st(k, "b_gemm")
    k.i("v_and_b32 v13, 1, v12")
    k.i(f"v_mul_u32_u24 v13, {18*1024}, v13")
    k.i("v_lshrrev_b32 v10, 1, v12")
    k.i("v_lshl_add_u32 v13, v10, 8, v13")
    k.i("v_lshl_add_u32 v13, v15, 4, v13")
    k.i("s_lshr_b32 s21, s14, 1")
    k.i(f"s_mul_i32 s22, s6, {36}")
    k.i("s_add_u32 s21, s21, s22")
    k.i("s_lshl_b32 s21, s21, 10")
    k.i("s_and_b32 s20, s14, 1")
    k.i("s_lshl_b32 s20, s20, 9")
    k.i("s_add_u32 s21, s21, s20")
    k.i(f"s_add_u32 s24, s21, {WS_H}")
    k.i(f"s_add_u32 s25, s21, {WS_H + 2048}")
    k.i(f"s_add_u32 s26, s21, {WS_X1}")
    k.i(f"s_add_u32 s27, s21, {WS_X1 + 2048}")
    for rt in range(2):
        st_ = STR + 4*rt
        k.i(f"v_mul_f32 v{st_}, v{st_}, v{st_+1}")
        k.i(f"v_mul_f32 v{st_+2}, v{st_+2}, v{st_+3}")
    for t in range(nt):
        PH, PX = 100 + 0, 104
        if t:
            PH, PX = 40, 44
        for rt in range(2):
            T = 76 + 12 * rt
            st_ = STR + 4*rt
            xr, yr = XR + 4*t + 2*rt, YR + 4*t + 2*rt
            a = ACC + 8*t + 4*rt
            x, y, u = T, T + 4, T + 8
            for h in range(2):
                k.i(f"v_lshlrev_b32 v{x+2*h}, 16, v{xr+h}")
                k.i(f"v_and_b32 v{x+2*h+1}, 0xffff0000, v{xr+h}")
                k.i(f"v_lshlrev_b32 v{y+2*h}, 16, v{yr+h}")
                k.i(f"v_and_b32 v{y+2*h+1}, 0xffff0000, v{yr+h}")
            for e in range(4):
                k.i(f"v_fma_f32 v{u+e}, v{x+e}, v{st_+1}, -v{st_}")
            for e in range(4):
                k.i(f"v_fma_f32 v{x+e}, v{u+e}, v{y+e}, v{x+e}")
            for e in range(4):
                k.i(f"v_fma_f32 v{u+e}, v{x+e}, v{st_+3}, -v{st_+2}")
            for e in range(4):
                k.i(f"v_add_f32 v{u+e}, v{u+e}, v{a+e}")
            k.i(f"v_cvt_pk_bf16_f32 v{PH+2*rt}, v{x}, v{x+1}")
            k.i(f"v_cvt_pk_bf16_f32 v{PH+2*rt+1}, v{x+2}, v{x+3}")
            k.i(f"v_cvt_pk_bf16_f32 v{PX+2*rt}, v{u}, v{u+1}")
            k.i(f"v_cvt_pk_bf16_f32 v{PX+2*rt+1}, v{u+2}, v{u+3}")
        for P in (PX, PH):
            k.i(f"v_permlane16_swap_b32 v{P}, v{P+2}")
            k.i(f"v_permlane16_swap_b32 v{P+1}, v{P+3}")
        k.i(f"buffer_store_dwordx4 {vr(PX,4)}, v13, s[44:47], s{26+t} offen{SC}")
        k.i(f"buffer_store_dwordx4 {vr(PH,4)}, v13, s[44:47], s{24+t} offen{SC}")
        SS = 76 + 4*t
        k.i(f"v_mov_b32 v{SS}, 0")
        k.i(f"v_mov_b32 v{SS+1}, 0")
        for e in range(4):
            k.i(f"v_dot2c_f32_bf16 v{SS}, s63, v{PX+e}")
            k.i(f"v_dot2c_f32_bf16 v{SS+1}, v{PX+e}, v{PX+e}")
        k.i(f"v_mov_b32 v{SS+2}, v{SS}")
        k.i(f"v_mov_b32 v{SS+3}, v{SS+1}")
        k.i(f"v_permlane32_swap_b32 v{SS}, v{SS+2}")
        k.i(f"v_permlane32_swap_b32 v{SS+1}, v{SS+3}")
        k.i(f"v_add_f32 v{SS}, v{SS}, v{SS+2}")
        k.i(f"v_add_f32 v{SS+1}, v{SS+1}, v{SS+3}")
        if t == 0:
            k.i("v_lshrrev_b32 v10, 1, v3")
            k.i("s_mul_i32 s20, s6, 36")
            k.i("s_add_u32 s20, s20, s14")
            k.i("s_lshl_b32 s20, s20, 8")
            k.i(f"s_add_u32 s20, s20, {WS_ST2}")
        k.i("s_mov_b32 exec_hi, 0")
        k.i(f"buffer_store_dwordx2 {vr(SS,2)}, v10, s[44:47], s20 offen offset:{1024*t}{SC}")
        k.i("s_mov_b32 exec_hi, -1")
    st(k, "b_st")
    signal(k, 32)
    st(k, "b_end")


def stage_c(k, isA):
    XR = 16
    k.i("s_lshl_b32 s8, s4, 6")
    k.i(f"s_mul_i32 s13, s5, {CHUNK}")
    k.i(f"s_add_u32 s14, s13, {WS_W3F}")
    k.i(f"s_add_u32 s15, s13, {WS_W4F}")
    if isA:
        k.i("s_lshl_b32 s20, s3, 11")
        k.i("v_add_u32 v4, s20, v3")
        k.i("s_lshl_b32 s20, s3, 10")
        k.i("s_add_u32 s21, s20, 8192")
        k.i("v_add_u32 v8, s21, v3")
        k.i("s_add_u32 s21, s20, 16384")
        k.i("v_add_u32 v0, s21, v3")
        k.i("s_lshl_b32 s20, s3, 12")
        k.i("v_add_u32 v2, s20, v3")
    else:
        k.i("s_lshl_b32 s20, s3, 11")
        k.i("s_add_u32 s20, s20, 4096")
        k.i("v_add_u32 v4, s20, v3")
        k.i("s_lshl_b32 s20, s3, 12")
        k.i("s_add_u32 s20, s20, 4096")
        k.i("v_add_u32 v2, s20, v3")
    k.i("s_lshl_b32 s20, s3, 11")
    k.i(f"s_add_u32 s20, s20, {20*1024}")
    k.i("v_add_u32 v13, s20, v3")
    p0 = [(4, 0), (4, 1024)] + ([(8, 0)] if isA else [])
    p1 = [(13, 0), (13, 1024)]
    p2a = [(2, 0), (2, 1024)] + ([(0, 0)] if isA else [])
    p2b = [(2, 2048), (2, 3072)]
    stream = []
    for ks in range(18):
        stream += [(14, ks, v, o) for v, o in p0]
    for ks in range(18):
        stream += [(14, ks, v, o) for v, o in p1]
    for ks in range(10):
        stream += [(15, ks, v, o) for v, o in p2a + p2b]
    SEG4 = os.environ.get("SEG4", "6")
    if SEG4 in "245":
        for ks in range(10, 18):
            stream += [(15, ks, v, o) for v, o in p2a + p2b]
    else:
        for ks in range(10, 18):
            stream += [(15, ks, v, o) for v, o in p2a]
        for ks in range(10, 18):
            stream += [(15, ks, v, o) for v, o in p2b]
    state = {"next": 0, "cur": None}

    def issue_w():
        n = state["next"]
        if n >= len(stream):
            return
        sb, ks, v, o = stream[n]
        if state["cur"] != (sb, ks):
            k.i(f"s_add_u32 s24, s{sb}, {ks*SLAB}")
            state["cur"] = (sb, ks)
        k.i(f"buffer_load_dwordx4 {ar(4*(n % NRING),4)}, v{v}, s[44:47], s24 offen offset:{o}")
        state["next"] = n + 1

    state["next"] = NRING
    k.i("s_lshl_b32 s9, s3, 3")
    k.i("v_lshrrev_b32 v5, 7, v3")
    k.i("v_add_u32 v5, s9, v5")
    k.i("v_and_b32 v6, 0x70, v3")
    k.i(f"v_mul_u32_u24 v7, {RS}, v5")
    k.i("v_add_u32 v7, v7, v6")
    k.i("v_and_b32 v5, 15, v5")
    k.i("v_lshlrev_b32 v5, 4, v5")
    k.i("v_lshl_add_u32 v5, v6, 4, v5")
    k.i("s_lshr_b32 s12, s3, 1")
    k.i("s_lshl_b32 s20, s4, 2")
    k.i("s_add_u32 s12, s12, s20")
    k.i(f"s_mul_i32 s12, s12, {18*1024}")
    k.i(f"s_add_u32 s12, s12, {WS_X1}")
    k.i("v_lshrrev_b32 v9, 7, v3")
    k.i("v_add_u32 v9, s9, v9")
    k.i("v_and_b32 v9, 31, v9")
    k.i("v_lshlrev_b32 v9, 3, v9")
    k.i("v_lshl_add_u32 v9, v6, 4, v9")
    k.i("v_cmp_gt_u32 vcc, 64, v6")
    k.i("v_mov_b32 v14, 0x7ff00000")
    k.i("v_cndmask_b32 v14, v14, v9, vcc")
    k.i("s_lshr_b32 s20, s3, 2")
    k.i("s_lshl_b32 s21, s4, 1")
    k.i("s_add_u32 s20, s20, s21")
    k.i(f"s_mul_i32 s20, s20, {36*256}")
    k.i(f"s_add_u32 s20, s20, {WS_ST2}")
    wait_cnt(k, [33], 8)
    st(k, "c_wait")
    XR, SR2, TT = 64, 100, 110
    for i in range(5):
        k.i(f"buffer_load_dwordx2 {vr(SR2+2*i,2)}, v{9 if i < 4 else 14}, s[44:47], s20 offen offset:{2048*(i&1)}{SC}")
        if i & 1:
            k.i("s_add_u32 s20, s20, 4096")
    k.i("v_mov_b32 v125, v5")

    def x1_load(i):
        k.i(f"buffer_load_dwordx4 {vr(XR+4*i,4)}, v125, s[44:47], s12 offen offset:{2048*(i&1)}{SC}")
        if i & 1:
            k.i("s_add_u32 s12, s12, 4096")
    for i in range(3):
        x1_load(i)
    k.i("v_mov_b32 v1, v7")
    vs, vq, vm, vrs, vt = SR2, SR2 + 1, SR2 + 2, 126, 127

    def norm_ops(i):
        T = TT
        ops = []
        for e in range(4):
            ops.append(f"v_lshlrev_b32 v{T+2*e}, 16, v{XR+4*i+e}")
            ops.append(f"v_and_b32 v{T+2*e+1}, 0xffff0000, v{XR+4*i+e}")
        for e in range(8):
            ops.append(f"v_fma_f32 v{T+e}, v{T+e}, v{vrs}, v{vt}")
        for e in range(4):
            ops.append(f"v_cvt_pk_bf16_f32 v{XR+4*i+e}, v{T+2*e}, v{T+2*e+1}")
        ops.append(f"ds_write_b128 v1, {vr(XR+4*i,4)} offset:{128*i}")
        return ops
    k.i(f"v_mul_u32_u24 v14, {RS}, v15")
    k.i("v_lshl_add_u32 v14, v12, 4, v14")
    k.i(f"v_add_u32 v5, {A_BYTES}, v3")
    k.i(f"v_add_u32 v6, {A_BYTES + 36864}, v3")
    k.i("s_lshl_b32 s20, s3, 12")
    if not isA:
        k.i("s_add_u32 s20, s20, 8192")
    k.i("v_add_u32 v7, s20, v5")
    if isA:
        k.i("s_lshr_b32 s20, s3, 1")
        k.i("s_lshl_b32 s20, s20, 12")
        k.i("s_and_b32 s21, s3, 1")
        k.i("s_lshl_b32 s21, s21, 3")
        k.i("s_add_u32 s20, s20, s21")
        k.i(f"s_add_u32 s20, s20, {4*4096}")
        k.i("v_add_u32 v9, s20, v5")
    k.i("s_lshl_b32 s20, s3, 12")
    k.i(f"s_add_u32 s20, s20, {10*4096}")
    k.i("v_add_u32 v10, s20, v5")
    k.i(f"s_mul_i32 s26, s5, {ACT}")
    k.i(f"s_add_u32 s26, s26, {WS_P}")
    k.i(f"s_mul_i32 s27, s4, {4*18*1024}")
    k.i("s_add_u32 s26, s26, s27")
    if isA:
        k.i("s_lshl_b32 s27, s3, 11")
        k.i("s_add_u32 s28, s26, s27")
        k.i("s_lshr_b32 s27, s3, 1")
        k.i("s_lshl_b32 s27, s27, 10")
        k.i("s_add_u32 s29, s26, s27")
        k.i("s_and_b32 s27, s3, 1")
        k.i("s_lshl_b32 s27, s27, 3")
        k.i("s_add_u32 s29, s29, s27")
        k.i("s_add_u32 s29, s29, 8192")
    else:
        k.i("s_lshl_b32 s27, s3, 11")
        k.i("s_add_u32 s28, s26, s27")
        k.i("s_add_u32 s28, s28, 2048")
    for i in range(1, 5):
        k.i(f"v_add_f32 v{vs}, v{vs}, v{SR2+2*i}")
        k.i(f"v_add_f32 v{vq}, v{vq}, v{SR2+2*i+1}")
    st(k, "c_x1")
    for i in range(3, 6):
        x1_load(i)
    reduce8(k, [vs, vq])
    ln_finish(k, vs, vq, vm, vrs, vt, 61, 60)
    for i in range(3):
        for o in norm_ops(i):
            k.i(o)
    for i in range(6, 9):
        x1_load(i)
    k.wait(lg=0)
    k.i("s_barrier")
    st(k, "c_main")

    ACC0, ACC1, ACC2, AF, TM = 16, 64, 96, 128, 160
    n0 = len(p0)
    wn = {"i": 0}

    def run_seg(ksl, tiles_acc, act_addr, first_zero, filler, per):
        def rd(i, buf):
            for rt in range(4):
                v, o = act_addr(ksl[i], rt)
                yield f"ds_read_b128 {vr(AF+16*buf+4*rt,4)}, v{v} offset:{o}"
        for o in rd(0, 0):
            k.i(o)
        credit = 0.0
        for i, ks in enumerate(ksl):
            nxt = list(rd(i + 1, (i + 1) & 1)) if i + 1 < len(ksl) else []
            for t, ab in enumerate(tiles_acc):
                slot = wn["i"] % NRING
                for rt in range(4):
                    a = vr(ab + 4*rt, 4)
                    c = "0" if (first_zero and i == 0) else a
                    k.i(f"v_mfma_f32_16x16x32_bf16 {a}, {ar(4*slot,4)}, {vr(AF+16*(i&1)+4*rt,4)}, {c}")
                    if nxt and (t > 0 or rt > 0):
                        k.i(nxt.pop(0))
                    credit += per
                    while filler and credit >= 1.0:
                        k.i(filler.pop(0))
                        credit -= 1.0
                wn["i"] += 1
                issue_w()
            for o in nxt:
                k.i(o)
        for o in filler:
            k.i(o)

    def gelu_pack_write(accs, waddr_pair, waddr_single):
        ops = []
        for rt in range(4):
            xs = [accs[0] + 4*rt + e for e in range(4)] + [accs[1] + 4*rt + e for e in range(4)]
            tm = [TM + e for e in range(8)]
            ops += gelu_ops(xs, tm, 11, 62)
            d = accs[0] + 4*rt
            for e in range(4):
                ops.append(f"v_cvt_pk_bf16_f32 v{d+e}, v{TM+2*e}, v{TM+2*e+1}")
            ops.append(f"ds_write_b128 v{waddr_pair}, {vr(d,4)} offset:{rt*1024}")
        if len(accs) > 2:
            for rp in range(2):
                xs = [accs[2] + 8*rp + e for e in range(8)]
                tm = [TM + e for e in range(8)]
                ops += gelu_ops(xs, tm, 11, 62)
                d = accs[2] + 8*rp
                for e in range(4):
                    ops.append(f"v_cvt_pk_bf16_f32 v{d+e}, v{TM+2*e}, v{TM+2*e+1}")
                ops.append(f"ds_write_b64 v{waddr_single}, {vr(d,2)} offset:{(2*rp)*1024}")
                ops.append(f"ds_write_b64 v{waddr_single}, {vr(d+2,2)} offset:{(2*rp+1)*1024}")
        return ops

    def a_addr(ks, rt):
        return (14, rt*16*RS + ks*64)

    def h_addr(ks, rt):
        o = (ks*4 + rt) * 1024
        return (5, o) if o < 36864 else (6, o - 36864)

    def store_ops(accs, sreg_pair, pair_imm, sreg_single):
        ops = []
        for rt in range(4):
            d = TM + 4*(rt & 1)
            for h in range(2):
                a = accs[h] + 4*rt
                ops.append(f"v_cvt_pk_bf16_f32 v{d+2*h}, v{a}, v{a+1}")
                ops.append(f"v_cvt_pk_bf16_f32 v{d+2*h+1}, v{a+2}, v{a+3}")
            ops.append(f"s_add_u32 s30, s{sreg_pair}, {rt*18*1024}")
            ops.append(f"buffer_store_dwordx4 {vr(d,4)}, v3, s[44:47], s30 offen offset:{pair_imm}{SC}")
        if len(accs) > 2:
            for rt in range(4):
                a = accs[2] + 4*rt
                ops.append(f"v_cvt_pk_bf16_f32 v{a}, v{a}, v{a+1}")
                ops.append(f"v_cvt_pk_bf16_f32 v{a+1}, v{a+2}, v{a+3}")
                ops.append(f"s_add_u32 s30, s{sreg_single}, {rt*18*1024}")
                ops.append(f"buffer_store_dwordx2 {vr(a,2)}, v3, s[44:47], s30 offen{SC}")
        return ops

    t0 = [ACC0 + 16*t for t in range(n0)]
    t1 = [ACC1, ACC1 + 16]
    t2a = t0
    t2b = [ACC2, ACC2 + 16]
    if os.environ.get("PRIOB") and not isA:
        k.i("s_setprio 1")
    if os.environ.get("PRIOA") and isA:
        k.i("s_setprio 1")
    for c in range(3):
        f = sum((norm_ops(i) for i in range(3*c + 3, 3*c + 6)), []) if c < 2 else []
        run_seg(list(range(6*c, 6*c + 6)), t0, a_addr, c == 0, f, len(f) / (6*4*n0 - 12.0))
        if c < 2:
            k.wait(lg=0)
            k.i("s_barrier")
    st(k, "c_s1")
    f = gelu_pack_write(t0, 7, 9)
    run_seg(list(range(18)), t1, a_addr, True, f, len(f) / (18*8 - float(os.environ.get("SL2", "24"))))
    k.wait(lg=0)
    k.i("s_barrier")
    st(k, "c_s2")
    f = gelu_pack_write(t1, 10, None)
    run_seg(list(range(10)), t2a + t2b, h_addr, True, f, len(f) / (10*4*(n0+2) - float(os.environ.get("SL3", "40"))))
    k.wait(lg=0)
    k.i("s_barrier")
    st(k, "c_s3")
    if SEG4 == "2":
        run_seg(list(range(10, 18)), t2a + t2b, h_addr, False, [], 0)
        st(k, "c_s4")
        for o in store_ops(t2a, 28, 0, 29) + store_ops(t2b, 28, 1024, None):
            k.i(o)
    elif SEG4 in "45":
        if SEG4 == "5" and not isA:
            k.i("s_setprio 1")
            run_seg(list(range(10, 15)), t2a + t2b, h_addr, False, [], 0)
            k.i("s_setprio 0")
            run_seg(list(range(15, 18)), t2a + t2b, h_addr, False, [], 0)
        else:
            run_seg(list(range(10, 18)), t2a + t2b, h_addr, False, [], 0)
        st(k, "c_s4")
        k.i("s_barrier")
        for o in store_ops(t2a, 28, 0, 29) + store_ops(t2b, 28, 1024, None):
            k.i(o)
    elif SEG4 == "6":
        run_seg(list(range(10, 18)), t2a, h_addr, False, [], 0)
        f = store_ops(t2a[:2], 28, 0, None)
        if isA:
            sa = t2a[2]
            k.i("s_lshr_b32 s20, s3, 1")
            k.i("s_lshl_b32 s20, s20, 12")
            k.i("s_and_b32 s21, s3, 1")
            k.i("s_lshl_b32 s22, s21, 3")
            k.i("s_add_u32 s22, s22, s20")
            k.i("v_add_u32 v9, s22, v3")
            k.i("s_lshl_b32 s22, s21, 11")
            k.i("s_add_u32 s22, s22, s20")
            k.i("v_add_u32 v7, s22, v3")
            for rt in range(4):
                a = sa + 4*rt
                k.i(f"v_cvt_pk_bf16_f32 v{a}, v{a}, v{a+1}")
                k.i(f"v_cvt_pk_bf16_f32 v{a+1}, v{a+2}, v{a+3}")
                k.i(f"ds_write_b64 v9, {vr(a,2)} offset:{1024*rt}")
            k.i(f"s_mul_i32 s22, s21, {2*18*1024 - 8}")
            k.i("s_add_u32 s29, s29, s22")
            k.wait(lg=0)
            for n in range(2):
                f.append(f"ds_read_b128 {vr(sa+4*n,4)}, v7 offset:{1024*n}")
            for n in range(2):
                f.append(f"s_add_u32 s30, s29, {n*18*1024}")
                f.append(f"buffer_store_dwordx4 {vr(sa+4*n,4)}, v3, s[44:47], s30 offen{SC}")
        k.i("s_barrier")
        run_seg(list(range(10, 18)), t2b, h_addr, False, f, len(f) / (8*8 - 16.0))
        st(k, "c_s4")
        for o in store_ops(t2b, 28, 1024, None):
            k.i(o)
    elif SEG4 == "3":
        run_seg(list(range(10, 18)), t2a, h_addr, False, [], 0)
        run_seg(list(range(10, 18)), t2b, h_addr, False, [], 0)
        st(k, "c_s4")
        for o in store_ops(t2a, 28, 0, 29) + store_ops(t2b, 28, 1024, None):
            k.i(o)
    else:
        run_seg(list(range(10, 18)), t2a, h_addr, False, [], 0)
        f = store_ops(t2a, 28, 0, 29)
        run_seg(list(range(10, 18)), t2b, h_addr, False, f, len(f) / (8*8 - 16.0))
        st(k, "c_s4")
        for o in store_ops(t2b, 28, 1024, None):
            k.i(o)
    signal(k, 36)
    st(k, "c_end")


def stage_d(k, name):
    k.i("s_mul_i32 s6, s4, 72")
    k.i("s_mul_i32 s7, s5, 9")
    k.i("s_add_u32 s6, s6, s7")
    k.i("s_add_u32 s6, s6, s3")
    k.i("v_lshrrev_b32 v5, 1, v12")
    k.i("v_lshl_add_u32 v5, v5, 4, v15")
    k.i("v_lshlrev_b32 v5, 4, v5")
    k.i("v_and_b32 v6, 1, v12")
    k.i("v_lshl_add_u32 v5, v6, 3, v5")
    k.i("v_lshrrev_b32 v9, 1, v12")
    k.i("v_lshlrev_b32 v9, 4, v9")
    k.i("v_lshl_add_u32 v9, v6, 5, v9")
    OUTSC = os.environ.get("OUTSC", "")

    def addr(su, vout, sp, B):
        k.i(f"s_mul_hi_u32 s7, s{su}, 0x0e38e38f")
        k.i("s_mul_i32 s8, s7, 18")
        k.i(f"s_sub_u32 s8, s{su}, s8")
        k.i("s_lshl_b32 s9, s7, 4")
        k.i(f"v_add_u32 v{vout}, s9, v15")
        k.i(f"v_mul_u32_u24 v{vout}, 1152, v{vout}")
        k.i(f"v_add_u32 v{vout}, v9, v{vout}")
        k.i("s_lshl_b32 s9, s8, 6")
        k.i(f"v_add_u32 v{vout}, s9, v{vout}")
        k.i(f"s_lshl_b32 s{sp}, s{su}, 10")
        k.i(f"s_add_u32 s9, s{sp}, {WS_H}")
        k.i(f"s_add_u32 s10, s{sp}, {WS_X1}")
        for h in range(2):
            k.i(f"buffer_load_dwordx2 {vr(B+32+2*h,2)}, v5, s[44:47], s9 offen offset:{512*h}{SC}")
            k.i(f"buffer_load_dwordx2 {vr(B+36+2*h,2)}, v5, s[44:47], s10 offen offset:{512*h}{SC}")
        k.i(f"s_add_u32 s{sp}, s{sp}, {WS_P}")

    def loads(sp, B):
        for p in range(8):
            k.i(f"buffer_load_dwordx4 {vr(B+4*p,4)}, v3, s[44:47], s{sp} offen{SC}")
            if p < 7:
                k.i(f"s_add_u32 s{sp}, s{sp}, {ACT}")

    def finish(vout, B):
        A = B + 40
        for n, p in enumerate([8, 9] + list(range(8))):
            src = B + 4*p
            for e in range(4):
                if n == 0:
                    k.i(f"v_lshlrev_b32 v{A+2*e}, 16, v{src+e}")
                    k.i(f"v_and_b32 v{A+2*e+1}, 0xffff0000, v{src+e}")
                else:
                    k.i(f"v_lshlrev_b32 v6, 16, v{src+e}")
                    k.i(f"v_and_b32 v7, 0xffff0000, v{src+e}")
                    k.i(f"v_add_f32 v{A+2*e}, v{A+2*e}, v6")
                    k.i(f"v_add_f32 v{A+2*e+1}, v{A+2*e+1}, v7")
        for e in range(4):
            k.i(f"v_cvt_pk_bf16_f32 v{A+8+e}, v{A+2*e}, v{A+2*e+1}")
        k.i(f"v_permlane16_swap_b32 v{A+8}, v{A+10}")
        k.i(f"v_permlane16_swap_b32 v{A+9}, v{A+11}")
        k.i(f"buffer_store_dwordx4 {vr(A+8,4)}, v{vout}, s[68:71], 0 offen{OUTSC}")
    addr(6, 4, 12, 16)
    k.i("s_cmp_lg_u32 s3, 0")
    k.i(f"s_cbranch_scc1 {name}_d1")
    sv = k.save()
    k.i("s_add_u32 s11, s6, 8")
    addr(11, 8, 13, 72)
    wait_cnt(k, [36], 8)
    st(k, "d_wait")
    loads(12, 16)
    loads(13, 72)
    finish(4, 16)
    finish(8, 72)
    k.i(f"s_branch {name}_ddone")
    k.restore(sv)
    k.label(f"{name}_d1")
    wait_cnt(k, [36], 8)
    st(k, "d_wait")
    loads(12, 16)
    finish(4, 16)
    k.label(f"{name}_ddone")


def kernels():
    import kf0
    return [(NAME + "_kernel", gen_kf(NAME + "_kernel"), 256, 512, max(KM_LDS, kf0.P0_LDS), 256, 96, ACCUM)]
```

```python
import os
from dsl import *
from common import *

KC_COPY = 4160
KC_CH = 4 * KC_COPY
UR0 = 4 * KC_CH
UR_CH = 4608
RL_RS = 1056
RL_TAIL = 32 * RL_RS
RL_WAVE = RL_TAIL + 4096
P0_LDS = 4 * RL_WAVE
TAP = 72
SC = " sc1"
LD_MODE = int(os.environ.get("LD_MODE", "2"))
DBG_W12, DBG_W34, DBG_Y = 0, 64, 128
N_Y = 145


def dbg_add(k, off):
    k.i("s_mov_b64 exec, 1")
    k.i("v_mov_b32 v1, 1")
    k.i("v_mov_b32 v10, 0")
    k.i(f"global_atomic_add v10, v1, s[40:41] offset:{off} sc1")
    k.i("s_mov_b64 exec, -1")


_u = [0]


def y_arrive(k):
    _u[0] += 1
    L = f"Lya{_u[0]}"
    k.i("s_mov_b64 exec, 1")
    k.i("v_mov_b32 v1, 1")
    k.i("v_mov_b32 v10, 0")
    k.i(f"global_atomic_add v1, v10, v1, s[40:41] offset:{DBG_Y} sc0 sc1")
    k.i("s_mov_b64 exec, -1")
    k.wait(vm=0)
    k.i("v_readfirstlane_b32 s12, v1")
    k.i("s_add_u32 s12, s12, 1")
    k.i(f"s_mul_hi_u32 s13, s12, {-(-(1 << 32) // N_Y)}")
    k.i(f"s_mul_i32 s13, s13, {N_Y}")
    k.i("s_cmp_lg_u32 s12, s13")
    k.i(f"s_cbranch_scc1 {L}")
    k.i("v_lshlrev_b32 v10, 7, v11")
    k.i("v_mov_b32 v1, 1")
    k.i(f"s_mov_b32 s12, {WS_FLAG + 128*128}")
    k.i("s_mov_b32 exec_hi, 0")
    k.i(f"buffer_store_dword v1, v10, s[44:47], s12 offen{SC}")
    k.i("s_mov_b32 exec_hi, -1")
    k.label(L)
    k.vmq = []


def conv_consumer(k, st):
    k.i("s_lshl_b32 s11, s10, 2")
    k.i("s_add_u32 s11, s11, s3")
    k.i("s_lshr_b32 s13, s11, 1")
    k.i("s_lshl_b32 s13, s13, 2")
    k.i("s_load_dword s56, s[26:27], s13")
    k.i("s_lshl_b32 s12, s11, 12")
    k.i("s_add_u32 s60, s24, s12")
    k.i("s_addc_u32 s61, s25, 0")
    k.i("s_and_b32 s61, s61, 0xffff")
    k.i("s_movk_i32 s62, 4096")
    k.i("s_mov_b32 s63, 0x20000")
    k.i("v_lshlrev_b32 v5, 4, v11")
    KL = 16
    for r in range(4):
        for m in range(3):
            k.i(f"buffer_load_dwordx4 {vr(KL + (r*3+m)*4, 4)}, v5, s[60:63], 0 offen offset:{1024*r + 4*m}")
    k.i(f"s_mul_i32 s14, s3, {KC_CH}")
    k.i(f"s_mul_i32 s15, s3, {UR_CH}")
    k.i(f"s_add_u32 s15, s15, {UR0}")
    k.i("v_add_u32 v6, s14, v5")
    k.i("v_and_b32 v12, 15, v11")
    k.i("v_lshrrev_b32 v15, 4, v11")
    k.i("v_add_u32 v8, 1, v12")
    k.i("v_and_b32 v9, 3, v8")
    k.i(f"v_mul_u32_u24 v9, {KC_COPY}, v9")
    k.i("v_and_b32 v8, 0xfffffffc, v8")
    k.i("v_add_u32 v8, 24, v8")
    k.i("v_lshlrev_b32 v10, 3, v15")
    k.i("v_sub_u32 v8, v8, v10")
    k.i("v_lshlrev_b32 v8, 1, v8")
    k.i("v_add3_u32 v8, v8, v9, s14")
    k.i("v_lshlrev_b32 v9, 5, v12")
    k.i("v_lshl_add_u32 v10, v15, 3, v9")
    k.i("v_lshl_add_u32 v9, v15, 4, v9")
    k.i("s_add_u32 s57, s15, 528")
    k.i("v_sub_u32 v9, s57, v9")
    k.i("v_lshrrev_b32 v7, 1, v12")
    k.i("v_lshlrev_b32 v7, 6, v7")
    k.i("v_and_b32 v4, 1, v12")
    k.i("v_lshl_add_u32 v7, v4, 4, v7")
    k.i("v_lshl_add_u32 v7, v15, 2, v7")
    k.i("s_add_u32 s57, s15, 504")
    k.i("v_sub_u32 v10, s57, v10")
    Z = 84
    for i in range(4):
        k.i(f"v_mov_b32 v{Z+i}, 0")
    k.i("v_add_u32 v13, s15, v5")
    k.i("s_mov_b64 exec, 0x3fffffff")
    k.i(f"ds_write_b128 v13, {vr(Z,4)} offset:4096")
    k.i("s_mov_b64 exec, -1")
    k.i("v_lshrrev_b32 v13, 1, v11")
    k.i(f"v_mul_u32_u24 v13, {KC_COPY}, v13")
    k.i("v_and_b32 v4, 1, v11")
    k.i("v_lshl_add_u32 v13, v4, 4, v13")
    k.i("v_add_u32 v13, s14, v13")
    k.i("s_mov_b64 exec, 0xff")
    k.i(f"ds_write_b128 v13, {vr(Z,4)}")
    k.i("s_mov_b64 exec, -1")
    ACC = 88
    for i in range(32):
        k.i(f"v_mov_b32 v{ACC+i}, 0")
    k.wait(lg=0)
    k.i("s_lshl_b32 s57, s56, 16")
    k.i("s_and_b32 s58, s56, 0xffff0000")
    k.i("s_bitcmp1_b32 s3, 0")
    k.i("s_cselect_b32 s56, s58, s57")
    T = 64
    for r in range(4):
        L = [KL + (r*3+m)*4 for m in range(3)]
        for i in range(4):
            k.i(f"v_alignbit_b32 v{T+i}, v{L[1]+i}, v{L[0]+i}, 16")
        for i in range(4):
            k.i(f"v_alignbit_b32 v{T+4+i}, v{L[2]+i}, v{L[1]+i}, 16")
        k.i(f"ds_write_b128 v6, {vr(L[0],4)} offset:{0*KC_COPY + 32 + 1024*r}")
        k.i(f"ds_write_b128 v6, {vr(L[1],4)} offset:{2*KC_COPY + 32 + 1024*r}")
        k.i(f"ds_write_b128 v6, {vr(T,4)} offset:{1*KC_COPY + 32 + 1024*r}")
        k.i(f"ds_write_b128 v6, {vr(T+4,4)} offset:{3*KC_COPY + 32 + 1024*r}")
        if r == 0:
            k.i(f"v_lshlrev_b32 v{T+8}, 16, v{L[0]}")
            k.i(f"v_alignbit_b32 v{T+9}, v{L[0]+1}, v{L[0]}, 16")
            k.i("s_mov_b64 exec, 1")
            k.i(f"ds_write_b32 v6, v{T+8} offset:{1*KC_COPY + 28}")
            k.i(f"ds_write_b32 v6, v{L[0]} offset:{2*KC_COPY + 28}")
            k.i(f"ds_write_b64 v6, {vr(T+8,2)} offset:{3*KC_COPY + 24}")
            k.i("s_mov_b64 exec, -1")
        T = 64 + 10 * ((r + 1) % 2)
    st(k, "p_kc")
    import km
    km.srd(k, 64, 16, 0, ACT)
    k.i("s_mul_i32 s68, s72, 1152")
    k.i("s_lshl_b32 s69, s3, 10")
    k.i("s_add_u32 s68, s68, s69")
    k.i("v_add_u32 v2, s68, v5")
    k.i(f"s_add_u32 m0, s69, {km.XL}")
    xl = []
    for n in range(9):
        g = []
        if n:
            g += ["v_add_u32 v2, 0x1000, v2", "s_add_u32 m0, m0, 4096"]
        g.append("buffer_load_dwordx4 v2, s[64:67], 0 offen lds")
        xl += [g, [], [], [], []]
    FR, GR = 120, 152

    def f_load(i1, i0):
        k.i(f"ds_read_b64 {vr(FR+4*i1,2)}, v8 offset:{512*i1 + 64*i0}")
        k.i(f"ds_read_b64 {vr(FR+4*i1+2,2)}, v8 offset:{512*i1 + 64*i0 + 8}")

    def g_load(buf, slot, cp, i0):
        k.i(f"ds_read_b128 {vr(GR+8*buf+4*slot,4)}, v9 offset:{512*(7-cp) + 64*i0}")

    for q in range(4):
        cps = [2*q, 2*q + 1]
        ni1 = 8 - cps[0]
        k.wait(lg=0)
        for i1 in range(ni1):
            f_load(i1, 0)
        k.i("s_barrier")
        st(k, f"p_q{q}")
        for s_, cp in enumerate(cps):
            g_load(0, s_, cp, 0)
        wl = xl if q == 2 else []
        for i0 in range(8):
            buf = i0 & 1
            gq = list(enumerate(cps)) if i0 < 7 else []
            for i1 in range(ni1):
                for s_, cp in enumerate(cps):
                    ct = cp + i1
                    if ct > 7:
                        continue
                    k.i(f"v_mfma_f32_16x16x32_bf16 {vr(ACC+4*ct,4)}, {vr(FR+4*i1,4)}, {vr(GR+8*buf+4*s_,4)}, {vr(ACC+4*ct,4)}")
                    if gq:
                        a, b = gq.pop(0)
                        g_load(buf ^ 1, a, b, i0 + 1)
                    if wl:
                        for o in wl.pop(0):
                            k.i(o)
                if i0 < 7:
                    f_load(i1, i0 + 1)
        assert not wl
    st(k, "p_mf")
    UE = 16
    for ct in range(8):
        k.i(f"ds_read_b64 {vr(UE+2*ct,2)}, v10 offset:{512*(7-ct)}")
    k.i(f"s_mul_i32 s57, s3, {KC_CH + 64}")
    k.i("v_add_u32 v7, s57, v7")
    TE = 40
    for ct in range(8):
        a = ACC + 4*ct
        t = TE + 8*(ct & 1)
        k.i(f"v_lshlrev_b32 v{t+3}, 16, v{UE+2*ct}")
        k.i(f"v_and_b32 v{t+2}, 0xffff0000, v{UE+2*ct}")
        k.i(f"v_lshlrev_b32 v{t+1}, 16, v{UE+2*ct+1}")
        k.i(f"v_and_b32 v{t+0}, 0xffff0000, v{UE+2*ct+1}")
        for r in range(4):
            k.i(f"v_fma_f32 v{t+r}, v{t+r}, s56, v{a+r}")
        k.i(f"v_cvt_pk_bf16_f32 v{t+4}, v{t+0}, v{t+2}")
        k.i(f"v_cvt_pk_bf16_f32 v{t+5}, v{t+1}, v{t+3}")
        k.i(f"ds_write2_b32 v7, v{t+4}, v{t+5} offset0:{128*(ct&1)} offset1:{128*(ct&1) + 8}")
        if ct & 1:
            k.i("v_add_u32 v7, 0x400, v7")
    k.wait(lg=0)


def conv_loader(k, st, tap):
    k.i("s_sub_u32 s11, s3, 4")
    k.i("s_lshl_b32 s12, s10, 5")
    k.i("s_load_dwordx8 s[48:55], s[22:23], s12")
    k.i("v_and_b32 v4, 31, v11")
    k.i("v_mul_u32_u24 v5, 4608, v4")
    k.i(f"s_mul_i32 s12, s11, {128*1152}")
    k.i("s_lshl_b32 s13, s10, 3")
    k.i("s_add_u32 s12, s12, s13")
    k.i("v_add_u32 v5, s12, v5")
    k.i("v_cmp_gt_u32 vcc, 32, v11")
    k.i("v_mov_b32 v2, s20")
    k.i("v_mov_b32 v3, s21")
    k.i("v_mov_b32 v6, s18")
    k.i("v_mov_b32 v7, s19")
    k.i("v_cndmask_b32 v2, v2, v6, vcc")
    k.i("v_cndmask_b32 v3, v3, v7, vcc")
    k.i("v_add_co_u32 v2, vcc, v2, v5")
    k.i("v_addc_co_u32 v3, vcc, 0, v3, vcc")
    G0 = 16
    def gl(Q, r): return G0 + 14*Q + 2*r
    def gh(Q, r): return G0 + 14*Q + 8 + 2*r
    for i in range(6):
        k.i(f"v_mov_b32 v{gh(0,0)+i}, 0")
    def issue(Q):
        for r in range(4):
            k.i(f"global_load_dwordx2 {vr(gl(Q,r),2)}, v[2:3], off offset:{1152*r}")
        if Q == 0:
            k.i("s_cmp_lg_u32 s11, 0")
            k.i("s_cselect_b64 exec, 1, 0")
            k.i("s_cbranch_execz Lld_nohalo")
        else:
            k.i("s_mov_b64 exec, 1")
        n0 = len(k.vmq)
        for r in range(3):
            k.i(f"global_load_dwordx2 {vr(gh(Q,r),2)}, v[2:3], off offset:{-3456 + 1152*r}")
        if Q == 0:
            k.label("Lld_nohalo")
            k.vmq = k.vmq[:n0]
        k.i("s_mov_b64 exec, -1")
        if Q < 3:
            k.i(f"v_add_co_u32 v2, vcc, {512*1152}, v2")
            k.i("v_addc_co_u32 v3, vcc, 0, v3, vcc")
    if os.environ.get("PFW") == "1":
        k.raw("    s_waitcnt vmcnt(0)")
    issue(0)
    issue(1)
    k.i("v_lshlrev_b32 v7, 3, v4")
    k.i("s_lshl_b32 s12, s11, 8")
    k.i(f"s_sub_u32 s12, {UR0 + 1016}, s12")
    k.i("v_sub_u32 v7, s12, v7")
    k.wait(lg=0)
    for c in range(4):
        for h in range(2):
            k.i(f"s_lshl_b32 s{tap+4*c+2*h}, s{48+2*c+h}, 16")
            k.i(f"s_and_b32 s{tap+4*c+2*h+1}, s{48+2*c+h}, 0xffff0000")
    U, V, VP, PK, TT = 72, 100, 116, 124, 132
    for Q in range(4):
        if Q == 0:
            k.wait(vm=7)
        for r in range(3):
            for h in range(2):
                k.i(f"v_mov_b32_dpp v{gh(Q,r)+h}, v{gl(Q,r+1)+h} wave_shr:1 row_mask:0xf bank_mask:0xf")
        for r in range(4):
            for h in range(2):
                k.i(f"v_permlane32_swap_b32 v{gl(Q,r)+h}, v{VP+2*r+h}")
        for rr in range(7):
            src = gh(Q, rr) if rr < 3 else gl(Q, rr - 3)
            for h in range(2):
                k.i(f"v_lshlrev_b32 v{U+rr*4+2*h}, 16, v{src+h}")
                k.i(f"v_and_b32 v{U+rr*4+2*h+1}, 0xffff0000, v{src+h}")
        for r in range(4):
            for h in range(2):
                k.i(f"v_lshlrev_b32 v{V+r*4+2*h}, 16, v{VP+2*r+h}")
                k.i(f"v_and_b32 v{V+r*4+2*h+1}, 0xffff0000, v{VP+2*r+h}")
        for c in range(4):
            t = TT + 4*(c & 1)
            for r in range(4):
                k.i(f"v_mul_f32 v{t+r}, s{tap+4*c+3}, v{U+(r+0)*4+c}")
            for j in (2, 1, 0):
                for r in range(4):
                    k.i(f"v_fmac_f32 v{t+r}, s{tap+4*c+j}, v{U+(r+3-j)*4+c}")
            for r in range(4):
                k.i(f"v_mul_f32 v{t+r}, v{t+r}, v{V+r*4+c}")
            k.i(f"v_cvt_pk_bf16_f32 v{PK+2*c}, v{t+3}, v{t+2}")
            k.i(f"v_cvt_pk_bf16_f32 v{PK+2*c+1}, v{t+1}, v{t+0}")
        k.i("s_mov_b32 exec_hi, 0")
        for c in range(4):
            k.i(f"ds_write_b64 v7, {vr(PK+2*c,2)} offset:{c*UR_CH + 1024*(3-Q)}")
        k.i("s_mov_b32 exec_hi, -1")
        k.wait(lg=0)
        st(k, f"l_q{Q}")
        if LD_MODE == 1 and Q + 2 < 4:
            issue(Q + 2)
        k.i("s_barrier")
        if LD_MODE == 2 and Q + 2 < 4:
            issue(Q + 2)


def conv_tail(k):
    k.i("v_bfe_u32 v2, v11, 2, 2")
    k.i(f"v_mul_u32_u24 v2, {KC_CH + 64}, v2")
    k.i("v_and_b32 v3, 3, v11")
    k.i("v_lshl_add_u32 v2, v3, 3, v2")
    k.i("v_lshrrev_b32 v3, 4, v11")
    k.i("v_lshl_add_u32 v2, v3, 6, v2")
    k.i("s_lshl_b32 s57, s3, 9")
    k.i("v_add_u32 v2, s57, v2")
    k.i("v_lshrrev_b32 v3, 3, v11")
    k.i(f"v_mul_u32_u24 v3, {Y2_T}, v3")
    k.i("v_and_b32 v4, 7, v11")
    k.i("v_lshl_add_u32 v3, v4, 4, v3")
    k.i(f"s_mul_i32 s57, s3, {16*Y2_T}")
    k.i("s_lshl_b32 s58, s10, 7")
    k.i("s_add_u32 s57, s57, s58")
    k.i(f"s_add_u32 s57, s57, {WS_Y2}")
    import km
    k.i("s_cmp_lg_u32 s3, 4")
    k.i("s_cbranch_scc1 Lcv_nopk")
    km.peek_dbg(k, DBG_W12, 111)
    k.label("Lcv_nopk")
    k.i("s_barrier")
    for n in range(2):
        k.i(f"ds_read_b64_tr_b16 {vr(16+4*n,2)}, v2 offset:{256*n}")
        k.i(f"ds_read_b64_tr_b16 {vr(18+4*n,2)}, v2 offset:{256*n + 32}")
    for n in range(2):
        k.i(f"buffer_store_dwordx4 {vr(16+4*n,4)}, v3, s[44:47], s57 offen{SC}")
        if n < 1:
            k.i(f"s_add_u32 s57, s57, {8*Y2_T}")
    k.wait(vm=0, lg=0)
    k.i("s_barrier")
    k.i("s_cmp_lg_u32 s3, 0")
    k.i("s_cbranch_scc1 Lcv_sig")
    y_arrive(k)
    k.label("Lcv_sig")


def relayout(k, st, G):
    k.i(f"s_mul_i32 s12, s10, {SLAB}")
    k.i("s_mov_b64 s[48:49], s[30:31]")
    k.i(f"s_mov_b32 s50, {D*D*2}")
    k.i("s_movk_i32 s13, 1152")
    k.i("s_mov_b32 s14, 0")
    if G == 8:
        k.i(f"s_sub_u32 s15, s12, {18*SLAB}")
        k.i("s_cmp_ge_u32 s10, 18")
        k.i("s_cselect_b64 s[48:49], s[32:33], s[48:49]")
        k.i("s_cselect_b32 s12, s15, s12")
        k.i("s_mov_b32 s15, 0")
        k.i("s_mov_b32 s11, s3")
    else:
        k.i("s_sub_u32 s15, s10, 36")
        k.i("s_mul_hi_u32 s56, s15, 0x0e38e38f")
        k.i("s_mul_i32 s57, s56, 18")
        k.i("s_sub_u32 s57, s15, s57")
        k.i(f"s_mul_i32 s57, s57, {32*9216}")
        k.i("s_mul_i32 s56, s56, 1152")
        k.i("s_add_u32 s12, s57, s56")
        k.i("s_mov_b64 s[48:49], s[34:35]")
        k.i("s_movk_i32 s13, 9216")
        k.i(f"s_mov_b32 s50, {D*F*2}")
        k.i("s_sub_u32 s15, s10, 180")
        k.i(f"s_mul_i32 s15, s15, {SLAB}")
        k.i("s_cmp_ge_u32 s10, 180")
        k.i("s_cselect_b64 s[48:49], s[36:37], s[48:49]")
        k.i("s_cselect_b32 s14, 1, s14")
        k.i("s_cselect_b32 s12, s15, s12")
        k.i("s_cselect_b32 s13, 1152, s13")
        k.i("s_and_b32 s15, s3, 3")
        k.i(f"s_mul_i32 s15, s15, {RL_WAVE}")
        k.i("s_lshr_b32 s11, s3, 2")
    k.i("s_and_b32 s49, s49, 0xffff")
    k.i("s_mov_b32 s51, 0x20000")
    k.i("v_lshlrev_b32 v5, 4, v11")
    k.i("v_lshrrev_b32 v6, 3, v11")
    k.i("v_mul_lo_u32 v6, v6, s13")
    k.i("v_and_b32 v7, 7, v11")
    k.i("v_lshl_add_u32 v6, v7, 4, v6")
    k.i("v_add_u32 v6, 1024, v6")
    if G == 2:
        k.raw("    s_waitcnt vmcnt(0)")
    NR = 32 // G
    k.i(f"s_mul_i32 s56, s11, {NR}")
    k.i(f"s_mul_i32 s57, s56, {RL_RS}")
    k.i("s_add_u32 m0, s15, s57")
    k.i("s_mul_i32 s56, s56, s13")
    k.i("s_add_u32 s56, s56, s12")
    for r in range(NR):
        k.i("buffer_load_dwordx4 v5, s[48:51], s56 offen lds")
        if r < NR - 1:
            k.i("s_add_u32 s56, s56, s13")
            k.i(f"s_add_u32 m0, m0, {RL_RS}")
    if G == 2:
        k.i("s_lshl_b32 s56, s11, 1")
    else:
        k.i("s_and_b32 s56, s11, 3")
    k.i("s_lshl_b32 s57, s56, 10")
    k.i("s_add_u32 s57, s57, s15")
    k.i(f"s_add_u32 m0, s57, {RL_TAIL}")
    k.i("s_lshl_b32 s57, s13, 3")
    k.i("s_mul_i32 s56, s56, s57")
    k.i("s_add_u32 s56, s56, s12")
    k.i("buffer_load_dwordx4 v6, s[48:51], s56 offen lds")
    if G == 2:
        k.i("s_add_u32 s56, s56, s57")
        k.i("s_add_u32 m0, m0, 1024")
        k.i("buffer_load_dwordx4 v6, s[48:51], s56 offen lds")
    k.i("s_cmp_eq_u32 s14, 1")
    k.i("s_cselect_b32 s56, 2, 3")
    k.i("s_cselect_b32 s57, 16, 4")
    k.i("v_lshrrev_b32 v7, 4, v11")
    k.i("v_lshlrev_b32 v7, s56, v7")
    k.i("v_bfe_u32 v8, v11, 2, 2")
    k.i("v_add_u32 v7, v7, v8")
    k.i("v_and_b32 v8, 3, v11")
    k.i("v_lshlrev_b32 v8, 3, v8")
    k.i("v_add_u32 v8, s15, v8")
    if G == 2:
        k.i("s_mul_i32 s59, s11, 18")
    else:
        k.i("s_mov_b32 s59, s11")
    k.i("s_lshl_b32 s58, s59, 5")
    k.i(f"v_mul_u32_u24 v9, {RL_RS}, v7")
    k.i("v_add3_u32 v9, v9, v8, s58")
    k.i(f"s_mul_i32 s58, s57, {RL_RS}")
    k.i("v_add_u32 v4, s58, v9")
    k.i("v_lshl_add_u32 v12, v7, 7, v8")
    k.i(f"v_add_u32 v12, {RL_TAIL}, v12")
    k.i("s_lshl_b32 s58, s57, 7")
    if G == 8:
        k.i("s_lshl_b32 s56, s11, 5")
        k.i("v_add_u32 v12, s56, v12")
    k.i("v_add_u32 v13, s58, v12")
    if G == 2:
        k.i(f"v_add_u32 v14, {14*32}, v9")
        k.i(f"v_add_u32 v15, {14*32}, v4")
        k.i("s_cmp_eq_u32 s11, 1")
    else:
        k.i("v_mov_b32 v14, v9")
        k.i("v_mov_b32 v15, v4")
        k.i("s_cmp_lt_u32 s11, 4")
    k.i("s_cselect_b64 vcc, -1, 0")
    k.i("v_cndmask_b32 v12, v14, v12, vcc")
    k.i("v_cndmask_b32 v13, v15, v13, vcc")
    k.i(f"s_mul_i32 s58, s10, {SLAB}")
    if G == 2:
        k.i(f"s_add_u32 s57, s59, 14")
    else:
        k.i("s_cselect_b32 s57, 32, 0")
        k.i("s_add_u32 s57, s57, s59")
    k.i("s_lshl_b32 s57, s57, 10")
    k.i("s_add_u32 s57, s57, s58")
    k.i("s_lshl_b32 s59, s59, 10")
    k.i("s_add_u32 s58, s58, s59")
    st(k, "r_iss")
    k.wait(vm=0)
    k.i("s_barrier")
    st(k, "r_ld")
    if G == 2:
        tiles = [("m", i) for i in range(14)] + [("x", i) for i in range(4)]
    else:
        tiles = [("m", 8*i) for i in range(4)] + [("x", 0)]
    NB = 8

    def rd(n):
        b = 16 + 4*(n % NB)
        kind, t = tiles[n]
        va, vb = ("v9", "v4") if kind == "m" else ("v12", "v13")
        k.i(f"ds_read_b64_tr_b16 {vr(b,2)}, {va} offset:{32*t}")
        k.i(f"ds_read_b64_tr_b16 {vr(b+2,2)}, {vb} offset:{32*t}")
    for n in range(min(6, len(tiles))):
        rd(n)
    cur = 0
    for n in range(len(tiles)):
        b = 16 + 4*(n % NB)
        kind, t = tiles[n]
        if kind == "m":
            while 1024*t - cur > 4095:
                k.i("s_add_u32 s58, s58, 4096")
                cur += 4096
            k.i(f"buffer_store_dwordx4 {vr(b,4)}, v5, s[44:47], s58 offen offset:{1024*t - cur}{SC}")
        else:
            k.i(f"buffer_store_dwordx4 {vr(b,4)}, v5, s[44:47], s57 offen offset:{1024*t}{SC}")
        if n + 6 < len(tiles):
            rd(n + 6)


def phase0(k, name, st, tap):
    k.i("s_cmp_ge_u32 s4, 18")
    k.i(f"s_cbranch_scc1 {name}_nonconv")
    k.i("s_mul_i32 s10, s5, 18")
    k.i("s_add_u32 s10, s10, s4")
    k.i("s_cmp_ge_u32 s3, 4")
    k.i(f"s_cbranch_scc1 {name}_loader")
    sv = k.save()
    conv_consumer(k, st)
    k.i(f"s_branch {name}_ctail")
    k.restore(sv)
    k.label(f"{name}_loader")
    if os.environ.get("PRIOL"):
        k.i("s_setprio 2")
    conv_loader(k, st, tap)
    if os.environ.get("PRIOL"):
        k.i("s_setprio 0")
    k.label(f"{name}_ctail")
    k.vmq, k.lgq = [], []
    k.i("s_nop 7")
    conv_tail(k)
    k.i(f"s_branch {name}_common")
    k.restore(sv)
    k.label(f"{name}_nonconv")
    k.i("s_sub_u32 s11, s4, 18")
    k.i("s_cmp_ge_u32 s11, 9")
    k.i(f"s_cbranch_scc1 {name}_rl12")
    k.i("s_lshl_b32 s10, s11, 2")
    k.i("s_and_b32 s12, s3, 3")
    k.i("s_add_u32 s10, s10, s12")
    k.i("s_mul_i32 s12, s5, 18")
    k.i("s_add_u32 s12, s12, s10")
    k.i("s_cmp_lt_u32 s10, 18")
    k.i("s_cselect_b32 s10, 36, 162")
    k.i("s_add_u32 s10, s10, s12")
    relayout(k, st, 2)
    k.i(f"s_branch {name}_rl_done2")
    k.restore(sv)
    k.label(f"{name}_rl12")
    k.i("s_sub_u32 s10, s11, 9")
    k.i("s_lshl_b32 s10, s10, 3")
    k.i("s_add_u32 s10, s10, s5")
    k.i("s_cmp_ge_u32 s10, 36")
    k.i(f"s_cbranch_scc1 {name}_misc")
    relayout(k, st, 8)
    k.wait(vm=0, lg=0)
    k.i("s_barrier")
    k.i("s_cmp_lg_u32 s3, 0")
    k.i(f"s_cbranch_scc1 {name}_cpf")
    dbg_add(k, DBG_W12)
    k.label(f"{name}_cpf")
    k.i("s_cmp_ge_u32 s10, 8")
    k.i(f"s_cbranch_scc1 {name}_common")
    k.i("v_lshlrev_b32 v12, 7, v0")
    k.i("s_mov_b32 s12, text_end-text_pc0")
    for n in range(2):
        k.i("v_cmp_gt_u32 vcc, s12, v12")
        k.i("s_and_saveexec_b64 s[14:15], vcc")
        k.i(f"s_cbranch_execz {name}_cpf_done")
        k.i("global_load_dword v166, v12, s[6:7]")
        k.i("v_add_u32 v12, 0x10000, v12")
    k.label(f"{name}_cpf_done")
    k.raw("    s_mov_b64 exec, -1")
    k.i(f"s_branch {name}_common")
    k.restore(sv)
    k.label(f"{name}_misc")
    k.i("s_cmp_lg_u32 s2, 255")
    k.i(f"s_cbranch_scc1 {name}_common")
    k.i("s_cmp_lg_u32 s3, 0")
    k.i(f"s_cbranch_scc1 {name}_common")
    k.i("v_lshlrev_b32 v12, 7, v11")
    k.i("v_mov_b32 v16, 0")
    k.i(f"s_mov_b32 s12, {WS_FLAG}")
    k.i(f"buffer_store_dword v16, v12, s[44:47], s12 offen{SC}")
    k.i(f"s_add_u32 s12, s12, 8192")
    k.i(f"buffer_store_dword v16, v12, s[44:47], s12 offen{SC}")
    k.i(f"s_add_u32 s12, s12, 8192")
    k.i(f"buffer_store_dword v16, v12, s[44:47], s12 offen{SC}")
    k.wait(vm=0)
    dbg_add(k, DBG_W12)
    y_arrive(k)
    k.i(f"s_branch {name}_common")
    k.label(f"{name}_rl_done2")
    k.raw("    s_waitcnt lgkmcnt(0)")
    k.raw("    s_barrier")
    k.vmq, k.lgq = [], []
    k.label(f"{name}_common")
    k.i("s_nop 7")
```

```python
import struct, os
from dsl import *
from common import *
from k2345 import f32, srd, gelu_ops, reduce16_stride4, reduce8, ln_finish, RS, GELU_C0, GELU_C1

A_BYTES = 64 * RS
H_BYTES = 18 * 4 * 1024
KM_LDS = A_BYTES + H_BYTES
ACCUM = 168
NRING = (256 - ACCUM) // 4
GT_OFF = 94208
XL = 94208
YL = 0
AT = 55296
CNT_A = WS_FLAG
CNT_B = WS_FLAG + 64 * 128
CNT_C = WS_FLAG + 96 * 128
SC = " sc1"
POLL_SLEEP = int(os.environ.get("POLL_SLEEP", "4"))
_uid = [0]


STMAP = {
    "": {"start": 0, "a_x": 1, "a_end": 2, "b_wait": 3, "b_end": 4, "c_wait": 5, "c_main": 6, "end": 7},
    "P": {"start": 0, "p_kc": 1, "p_q0": 2, "p_q1": 3, "p_q2": 4, "p_q3": 5, "p_mf": 6, "common": 7,
          "l_q0": 2, "l_q1": 3, "l_q2": 4, "l_q3": 5, "r_iss": 1, "r_ld": 2},
    "F": {"start": 0, "common": 1, "a_yw": 2, "a_end": 3, "b_end": 4, "c_main": 5, "c_end": 6, "end": 7},
    "A2": {"common": 0, "a_w12": 1, "a_yw": 2, "a_y": 3, "a_ln": 4, "a_bar": 5, "a_gemm": 6, "a_end": 7},
    "A": {"start": 0, "a_issued": 1, "a_x": 2, "a_wissued": 3, "a_ln": 4, "a_bar": 5, "a_gemm": 6, "a_end": 7},
    "B": {"a_end": 0, "b_wait": 1, "b_g": 2, "b_gemm": 3, "b_st": 4, "b_end": 5, "c_wait": 6, "c_x1": 7},
    "C": {"c_main": 0, "c_s1": 1, "c_s2": 2, "c_s3": 3, "c_s4": 4, "c_end": 5, "d_wait": 6, "end": 7},
}[os.environ.get("STMAP", "")]


def st(k, nm):
    if nm in STMAP:
        k.stamp(STMAP[nm])


def signal(k, soff_reg, keep=0):
    k.wait(vm=keep, lg=0)
    k.i("s_barrier")
    _uid[0] += 1
    L = f"Lsig{_uid[0]}"
    k.i("s_cmp_lg_u32 s3, 4")
    k.i(f"s_cbranch_scc1 {L}")
    k.raw("    s_mov_b64 exec, 1")
    k.raw("    v_mov_b32 v1, 1")
    k.raw("    v_mov_b32 v10, 0")
    k.raw(f"    buffer_atomic_add v1, v10, s[44:47], s{soff_reg} offen sc1")
    k.raw("    s_mov_b64 exec, -1")
    k.label(L)


def wait_cnt(k, soff_regs, target):
    _uid[0] += 1
    L = f"Lw{_uid[0]}"
    k.i("s_cmp_lg_u32 s3, 4")
    k.i(f"s_cbranch_scc1 {L}_done")
    k.raw("    v_mov_b32 v10, 0")
    k.raw("    s_mov_b32 s35, 0")
    for n, so in enumerate(soff_regs):
        if os.environ.get("PPOLL"):
            k.raw("    s_waitcnt vmcnt(0)")
            k.raw("    v_mov_b32 v1, 0")
            for _ in range(3):
                k.raw(f"    buffer_load_dword v1, v10, s[44:47], s{so} offen sc1")
                k.raw("    s_sleep 3")
            k.label(f"{L}_{n}")
            k.raw(f"    buffer_load_dword v1, v10, s[44:47], s{so} offen sc1")
            k.raw("    s_add_u32 s35, s35, 1")
            k.raw("    s_waitcnt vmcnt(3)")
            k.raw("    v_readfirstlane_b32 s34, v1")
            k.raw("    s_cmp_gt_u32 s35, 0x80000")
            k.raw(f"    s_cbranch_scc1 {L}_done")
            k.raw(f"    s_cmp_lg_u32 s34, {target}")
            k.raw(f"    s_cbranch_scc1 {L}_{n}")
            continue
        k.label(f"{L}_{n}")
        k.raw(f"    buffer_load_dword v1, v10, s[44:47], s{so} offen sc1")
        k.raw("    s_add_u32 s35, s35, 1")
        k.raw("    s_waitcnt vmcnt(0)")
        k.raw("    v_readfirstlane_b32 s34, v1")
        k.raw("    s_cmp_gt_u32 s35, 0x80000")
        k.raw(f"    s_cbranch_scc1 {L}_done")
        k.raw(f"    s_cmp_lg_u32 s34, {target}")
        k.raw(f"    s_cbranch_scc1 {L}_{n}")
    k.label(f"{L}_done")
    k.i("s_barrier")


def poll_dbg(k, off, target, sreg=34, sleep=32):
    _uid[0] += 1
    L = f"Lpd{_uid[0]}"
    k.raw("    v_mov_b32 v10, 0")
    k.raw(f"    s_mov_b32 s{sreg+1}, 0")
    k.label(L)
    k.raw(f"    global_load_dword v1, v10, s[40:41] offset:{off} sc1")
    k.raw(f"    s_add_u32 s{sreg+1}, s{sreg+1}, 1")
    k.raw("    s_waitcnt vmcnt(0)")
    k.raw(f"    v_readfirstlane_b32 s{sreg}, v1")
    k.raw(f"    s_cmp_ge_u32 s{sreg}, {target}")
    k.raw(f"    s_cbranch_scc1 {L}_x")
    k.raw(f"    s_sleep {sleep}")
    k.raw(f"    s_cmp_lt_u32 s{sreg+1}, 0x80000")
    k.raw(f"    s_cbranch_scc1 {L}")
    k.label(f"{L}_x")


def peek_dbg(k, off, vreg):
    k.raw("    v_mov_b32 v10, 0")
    k.raw(f"    global_load_dword v{vreg}, v10, s[40:41] offset:{off} sc1")


def check_dbg(k, off, target, vreg, sleep=8):
    if os.environ.get("NOASYNC"):
        poll_dbg(k, off, target)
        return
    _uid[0] += 1
    L = f"Lck{_uid[0]}"
    k.raw("    s_nop 1")
    k.raw(f"    v_readfirstlane_b32 s34, v{vreg}")
    k.raw(f"    s_cmp_ge_u32 s34, {target}")
    k.raw(f"    s_cbranch_scc1 {L}")
    poll_dbg(k, off, target, sleep=sleep)
    k.label(L)


def wfrag(t, ks):
    if t == 0:
        return ar(4 * ks, 4)
    return ar(72 + 4 * ks, 4) if ks < 4 else vr(112 + 4 * (ks - 4), 4)


def small_wload_ops(wsoff, two, va=3, vb=4, first=0):
    g = [["s_add_u32 s37, s73, s3", "s_lshl_b32 s37, s37, 10", f"s_add_u32 s37, s37, {wsoff}"]]
    for ks in range(18):
        o = [f"buffer_load_dwordx4 {wfrag(first,ks)}, v{va}, s[44:47], s37 offen"]
        if two:
            o.append(f"buffer_load_dwordx4 {wfrag(1,ks)}, v{vb}, s[44:47], s37 offen")
        if ks < 17:
            o.append(f"s_add_u32 s37, s37, {SLAB}")
        g.append(o)
    return g


def small_wloads(k, wsoff, two, va=3, vb=4, first=0):
    for g in small_wload_ops(wsoff, two, va, vb, first):
        for o in g:
            k.i(o)


class Inter:
    def __init__(self, k, groups, every):
        self.k, self.groups, self.every, self.n = k, list(groups), every, 0

    def i(self, text):
        self.k.i(text)
        self.n += 1
        if self.groups and self.n % self.every == 0 and "exec" not in text and not text.startswith("s_cmp"):
            for o in self.groups.pop(0):
                self.k.i(o)

    def flush(self):
        for g in self.groups:
            for o in g:
                self.k.i(o)
        self.groups = []

    def __getattr__(self, a):
        return getattr(self.k, a)


def small_gemm(k, two, act_read, ACC, AF, refill=None, first=0):
    ntile = 2 if two else 1
    NB = 4
    for ks in range(NB - 1):
        for rt in range(2):
            act_read(AF + 8*(ks % NB) + 4*rt, rt, ks)
    for ks in range(18):
        if ks + NB - 1 < 18:
            for rt in range(2):
                act_read(AF + 8*((ks+NB-1) % NB) + 4*rt, rt, ks + NB - 1)
        for t in range(ntile):
            for rt in range(2):
                a = vr(ACC + 8*t + 4*rt, 4)
                k.i(f"v_mfma_f32_16x16x32_bf16 {a}, {wfrag(t+first,ks)}, {vr(AF+8*(ks%NB)+4*rt,4)}, {'0' if ks == 0 else a}")
        if refill:
            refill(ks)


def prefetch_lines(k, base_const, xmul, vdst):
    pass


def coop_prefetch(k, first, second, second_per_x, first_per_x):
    if os.environ.get("NOCOOP"):
        return
    _uid[0] += 1
    L = f"Lpf{_uid[0]}"
    k.i("s_cmp_ge_u32 s3, 6")
    k.i(f"s_cbranch_scc1 {L}")
    k.i("s_cmp_ge_u32 s3, 3")
    k.i(f"s_cselect_b32 s20, {second - first}, 0")
    k.i("s_cselect_b32 s21, 3, 0")
    k.i(f"s_add_u32 s20, s20, {first}")
    k.i("s_sub_u32 s21, s3, s21")
    k.i("s_mul_i32 s21, s21, 54")
    k.i("s_mul_i32 s22, s4, 162")
    k.i("s_add_u32 s21, s21, s22")
    k.i("s_lshl_b32 s21, s21, 7")
    k.i("s_add_u32 s20, s20, s21")
    if first_per_x:
        k.i(f"s_mul_i32 s21, s5, {CHUNK}")
        k.i("s_add_u32 s20, s20, s21")
    k.raw("    v_lshlrev_b32 v1, 7, v2")
    k.raw("    s_mov_b32 exec_hi, 0x3fffff")
    k.raw("    buffer_load_dword v1, v1, s[44:47], s20 offen")
    k.raw("    s_mov_b64 exec, -1")
    k.label(L)


def gen_kf(name):
    import kf0
    k = Kern()
    k.stamps = STAMPS
    k.raw(f".globl {name}\n.p2align 8\n.type {name},@function\n{name}:")
    k.i("s_cmp_ge_u32 s2, 256")
    k.i(f"s_cbranch_scc1 {name}_end")
    st(k, "start")
    k.i("s_load_dwordx16 s[16:31], s[0:1], 0")
    k.i("s_load_dwordx8 s[32:39], s[0:1], 64")
    k.i("s_load_dwordx4 s[40:43], s[0:1], 96")
    k.i("v_lshrrev_b32 v1, 6, v0")
    k.i("v_and_b32 v11, 63, v0")
    k.i("v_readfirstlane_b32 s3, v1")
    k.i("s_lshr_b32 s4, s2, 3")
    k.i("s_and_b32 s5, s2, 7")
    k.i("s_lshl_b32 s74, s5, 3")
    k.i("s_lshr_b32 s75, s4, 2")
    k.i("s_add_u32 s74, s74, s75")
    k.i("s_and_b32 s75, s4, 3")
    k.i("s_lshr_b32 s72, s75, 1")
    k.i("s_add_u32 s72, s72, 1")
    k.i("s_sub_u32 s73, 0, s72")
    k.i("s_bitcmp1_b32 s75, 0")
    k.i("s_cselect_b32 s72, s72, s73")
    k.i("s_lshl_b32 s73, s74, 5")
    k.i("s_add_u32 s72, s72, s73")
    k.i("s_mul_i32 s73, s75, 9")
    k.i("s_getpc_b64 s[6:7]")
    k.label("text_pc0")
    k.i("v_and_b32 v12, 127, v0")
    k.i("s_lshl_b32 s8, s4, 7")
    k.i("v_add_u32 v12, s8, v12")
    k.i("v_lshrrev_b32 v14, 1, v12")
    k.i("v_and_b32 v12, 1, v12")
    k.i("v_add_u32 v12, s5, v12")
    k.i("v_lshlrev_b32 v12, 7, v12")
    k.i("s_movk_i32 s8, 1152")
    k.i("v_mad_u32_u24 v12, v14, s8, v12")
    k.i("v_lshlrev_b32 v13, 7, v11")
    k.wait(lg=0)
    srd(k, 44, 42, 0, 0x10000000)
    if os.environ.get("PFW") == "1":
        k.i("s_cmp_lt_u32 s3, 4")
        k.i(f"s_cbranch_scc1 {name}_nopf")
        k.i("s_cmp_lt_u32 s3, 6")
    else:
        k.i("s_cmp_ge_u32 s3, 4")
        k.i(f"s_cbranch_scc1 {name}_nopf")
        k.i("s_cmp_lt_u32 s3, 2")
    k.i("s_cselect_b64 s[8:9], s[18:19], s[20:21]")
    k.raw("    global_load_dword v166, v12, s[8:9]")
    k.raw("    global_load_dword v167, v13, s[6:7]")
    k.label(f"{name}_nopf")
    if os.environ.get("TLBW"):
        k.i("s_cmp_lg_u32 s3, 3")
        k.i(f"s_cbranch_scc1 {name}_notlb")
        k.i("v_lshlrev_b32 v13, 21, v11")
        k.i("v_min_u32 v13, 0x3000000, v13")
        k.raw("    buffer_load_dword v165, v13, s[44:47], 0 offen")
        k.i("v_and_b32 v13, 1, v11")
        k.i("v_lshlrev_b32 v13, 21, v13")
        k.raw("    global_load_dword v164, v13, s[38:39]")
        k.label(f"{name}_notlb")
    k.i("v_mov_b32 v111, 0")
    kf0.phase0(k, name, st, 56)
    st(k, "common")
    k.i("v_and_b32 v2, 63, v0")
    k.i("s_lshl_b32 s6, s5, 3")
    k.i("s_lshr_b32 s7, s4, 2")
    k.i("s_add_u32 s6, s6, s7")
    k.i("s_and_b32 s7, s4, 3")
    k.i("s_lshl_b32 s8, s6, 5")
    k.i("s_lshr_b32 s9, s7, 1")
    k.i("s_add_u32 s9, s9, 1")
    k.i("s_sub_u32 s10, 0, s9")
    k.i("s_bitcmp1_b32 s7, 0")
    k.i("s_cselect_b32 s9, s9, s10")
    k.i("s_add_u32 s10, s8, s9")
    k.i("s_lshl_b32 s11, s3, 2")
    k.i("s_add_u32 s11, s11, s10")
    k.i("v_and_b32 v5, 3, v2")
    k.i("v_lshrrev_b32 v6, 2, v2")
    k.i("v_add_u32 v7, s11, v5")
    k.i("v_lshlrev_b32 v3, 4, v2")
    k.i("v_add_u32 v4, 0x1000, v3")
    k.i("v_and_b32 v15, 15, v2")
    k.i("v_lshrrev_b32 v12, 4, v2")
    k.i("s_lshl_b32 s15, s3, 10")
    srd(k, 48, 16, 0, ACT)
    k.i("s_cmp_lt_u32 s4, 18")
    k.i(f"s_cbranch_scc1 {name}_xdone")
    k.i("s_mul_i32 s13, s10, 1152")
    k.i("s_add_u32 s13, s13, s15")
    k.i("v_add_u32 v8, s13, v3")
    k.i(f"s_add_u32 m0, s15, {XL}")
    for n in range(5):
        if n == 4:
            k.i("s_cmp_lt_u32 s3, 4")
            k.i("s_cselect_b32 s13, 8192, 0")
            k.i("v_add_u32 v8, s13, v8")
            k.i("s_add_u32 m0, m0, s13")
        elif n:
            k.i("v_add_u32 v8, 0x2000, v8")
            k.i("s_add_u32 m0, m0, 8192")
        k.i("buffer_load_dwordx4 v8, s[48:51], 0 offen lds")
    k.label(f"{name}_xdone")
    k.vmq = []
    srd(k, 52, 42, WS_Y2, ACT)
    srd(k, 56, 42, WS_ST, S * 16)
    srd(k, 68, 38, 0, ACT)
    k.i("s_ashr_i32 s12, s10, 4")
    k.i(f"s_mul_i32 s13, s12, {Y2_T}")
    k.i("s_add_u32 s13, s13, s15")
    k.i("v_add_u32 v13, s13, v3")
    k.i("s_lshl_b32 s13, s3, 2")
    k.i("v_add_u32 v8, s13, v5")
    k.i("v_mul_u32_u24 v8, 1152, v8")
    k.i("v_lshl_add_u32 v8, v6, 3, v8")
    k.i(f"v_add_u32 v8, {XL}, v8")
    k.i("v_ashrrev_i32 v9, 4, v7")
    k.i("v_subrev_u32 v9, s12, v9")
    k.i(f"v_mul_u32_u24 v9, {Y2_T}, v9")
    k.i("v_and_b32 v10, 15, v7")
    k.i("v_lshl_add_u32 v9, v10, 3, v9")
    k.i("v_lshl_add_u32 v9, v6, 7, v9")
    k.i("s_mul_i32 s14, s7, 9")
    k.i("s_add_u32 s14, s14, s3")
    k.i(f"s_mov_b32 s60, {f32(1.0/576)}")
    k.i(f"s_mov_b32 s61, {f32(1e-5)}")
    k.i(f"s_mov_b32 s62, {f32(-GELU_C0)}")
    k.i(f"v_mov_b32 v11, {f32(-GELU_C1)}")
    k.i("s_mov_b32 s63, 0x3f803f80")
    k.i("s_lshl_b32 s31, s6, 7")
    k.i(f"s_add_u32 s31, s31, {CNT_A}")
    k.i("s_lshr_b32 s32, s6, 1")
    k.i("s_lshl_b32 s32, s32, 7")
    k.i(f"s_add_u32 s32, s32, {CNT_B}")
    k.i("s_lshl_b32 s33, s4, 7")
    k.i(f"s_add_u32 s36, s33, {CNT_C}")
    k.i(f"s_add_u32 s33, s33, {CNT_B}")
    k.i("s_cmp_lg_u32 s3, 4")
    k.i(f"s_cbranch_scc1 {name}_ab1")
    sv = k.save()
    if os.environ.get("PRIO4"):
        k.i("s_setprio 3")
    stage_a(k, True)
    stage_b(k, True)
    if os.environ.get("PRIO4"):
        k.i("s_setprio 0")
    k.i(f"s_branch {name}_cb")
    k.restore(sv)
    k.label(f"{name}_ab1")
    stage_a(k, False)
    stage_b(k, False)
    k.i("s_cmp_ge_u32 s3, 4")
    k.i(f"s_cbranch_scc1 {name}_cb")
    k.label(f"{name}_ca")
    k.i("s_nop 4")
    sv = k.save()
    stage_c(k, True)
    k.i(f"s_branch {name}_d")
    k.restore(sv)
    k.label(f"{name}_cb")
    k.i("s_nop 4")
    stage_c(k, False)
    k.label(f"{name}_d")
    k.i("s_nop 4")
    stage_d(k, name)
    st(k, "end")
    k.stamp_flush(0, WS_STAMP)
    k.label(f"{name}_end")
    k.i("s_endpgm")
    return k


def sum_sq(k, regs, acc):
    for n, r in enumerate(regs):
        k.i(f"v_add_f32 v{acc[n & 1]}, v{acc[n & 1]}, v{r}")
        k.i(f"v_fmac_f32 v{acc[2 + (n & 1)]}, v{r}, v{r}")


def stage_a(k, two):
    XR, YR = 16, 34
    X, T = 52, 88
    vs, vq, vt, t0, vm1, vr1, vm2, vr2, t1, vm3, vr3, vs2, vq2 = 96, 97, 98, 99, 100, 101, 102, 103, 104, 105, 106, 107, 108
    acc = [vs, vs2, vq, vq2]

    def zero():
        for r in acc:
            k.i(f"v_mov_b32 v{r}, 0")

    def fin(m, r):
        k.i(f"v_add_f32 v{vs}, v{vs}, v{vs2}")
        k.i(f"v_add_f32 v{vq}, v{vq}, v{vq2}")
        reduce16_stride4(k, [vs, vq], [t0, t1])
        ln_finish(k, vs, vq, m, r, vt, 61, 60)
    import kf0
    tag = "t" if two else "o"
    if two:
        check_dbg(k, kf0.DBG_W12, 37, 111, sleep=16)
    k.wait(vm=0)
    k.i("s_barrier")
    W1LATE = os.environ.get("W1LATE", "0") == "1"
    if W1LATE:
        k.i("s_cmp_lt_u32 s4, 18")
        k.i(f"s_cbranch_scc1 La_w1a{tag}")
    small_wloads(k, WS_W1F, two)
    if W1LATE:
        k.label(f"La_w1a{tag}")
        k.vmq = []
    W2E = os.environ.get("W2E", "1") == "1"
    if W2E and not two:
        small_wloads(k, WS_W2F, False, first=1)
    st(k, "a_w12")
    if two:
        import kf0
        k.i("s_sub_u32 s20, s4, 18")
        k.i("s_cmp_ge_u32 s20, 9")
        k.i("s_cbranch_scc1 La_now34")
        kf0.dbg_add(k, kf0.DBG_W34)
        k.vmq = []
        k.label("La_now34")
    for i in range(9):
        k.i(f"ds_read_b64 {vr(XR+2*i,2)}, v8 offset:{128*i}")
    zero()
    for i in range(18):
        k.i(f"v_dot2c_f32_bf16 v{acc[i & 1]}, s63, v{XR+i}")
        k.i(f"v_dot2c_f32_bf16 v{acc[2 + (i & 1)]}, v{XR+i}, v{XR+i}")
        k.i(f"v_lshlrev_b32 v{X+2*i}, 16, v{XR+i}")
        k.i(f"v_and_b32 v{X+2*i+1}, 0xffff0000, v{XR+i}")
    fin(vm1, vr1)
    k.i("s_lshl_b32 s20, s4, 7")
    k.i(f"s_add_u32 s20, s20, {WS_FLAG + 128*128}")
    wait_cnt(k, [20], 1)
    st(k, "a_yw")
    k.i(f"s_add_u32 m0, s15, {YL}")
    for n in range(7):
        if n == 6:
            k.i("s_cmp_lt_u32 s3, 6")
            k.i("s_cselect_b32 s13, 8192, 0")
            k.i("v_add_u32 v13, s13, v13")
            k.i("s_add_u32 m0, m0, s13")
        elif n:
            k.i("v_add_u32 v13, 0x2000, v13")
            k.i("s_add_u32 m0, m0, 8192")
        k.i(f"buffer_load_dwordx4 v13, s[52:55], 0 offen{SC} lds")
    if two:
        peek_dbg(k, kf0.DBG_W34, 110)
    nw2 = 0 if (two or W2E) else 18
    if W1LATE:
        k.i("s_cmp_ge_u32 s4, 18")
        k.i(f"s_cbranch_scc1 La_w1b{tag}")
        small_wloads(k, WS_W1F, two)
        k.label(f"La_w1b{tag}")
    if not two and not W2E:
        small_wloads(k, WS_W2F, False, first=1)
    if W1LATE:
        k.i("s_cmp_ge_u32 s4, 18")
        k.i(f"s_cbranch_scc1 La_w1c{tag}")
        k.raw("    s_waitcnt vmcnt(36)")
        k.i(f"s_branch La_w1d{tag}")
        k.label(f"La_w1c{tag}")
        k.raw(f"    s_waitcnt vmcnt({nw2})")
        k.label(f"La_w1d{tag}")
        k.vmq = k.vmq[-36:]
    else:
        k.wait(vm=nw2)
    k.i("s_barrier")
    st(k, "a_y")
    for i in range(9):
        k.i(f"ds_read_b64 {vr(YR+2*i,2)}, v9 offset:{2048*i}")
    k0 = k
    zero()
    for i in range(9):
        for h in range(2):
            k.i(f"v_lshlrev_b32 v{T+2*h}, 16, v{YR+2*i+h}")
            k.i(f"v_and_b32 v{T+2*h+1}, 0xffff0000, v{YR+2*i+h}")
        for e in range(4):
            k.i(f"v_fma_f32 v{T+4+e}, v{X+4*i+e}, v{vr1}, v{vt}")
        for e in range(4):
            k.i(f"v_fma_f32 v{X+4*i+e}, v{T+4+e}, v{T+e}, v{X+4*i+e}")
        sum_sq(k, [X+4*i+e for e in range(4)], acc)
    fin(vm2, vr2)
    k.i("v_lshlrev_b32 v13, 4, v7")
    k0.i("s_mov_b64 exec, 15")
    k0.i(f"buffer_store_dwordx4 {vr(vm1,4)}, v13, s[56:59], 0 offen{SC}")
    k0.i("s_mov_b64 exec, -1")
    k.i(f"v_mul_f32 v{vm3}, v{vr2}, v{vr2}")
    k.i(f"v_subrev_f32 v{vq}, s61, v{vq}")
    k.i(f"v_mul_f32 v{vm3}, v{vm3}, v{vq}")
    k.i(f"v_add_f32 v{vm3}, s61, v{vm3}")
    k.i(f"v_rsq_f32 v{vr3}, v{vm3}")
    k.i(f"v_mul_f32 v{vt}, v{vt}, v{vr3}")
    k.i(f"v_mul_f32 v{vr3}, v{vr3}, v{vr2}")
    k.i("s_lshl_b32 s15, s3, 2")
    k.i("v_add_u32 v13, s15, v5")
    k.i(f"v_mul_u32_u24 v13, {RS}, v13")
    k.i("v_lshl_add_u32 v13, v6, 3, v13")
    k.i(f"v_add_u32 v13, {AT}, v13")
    for i in range(9):
        for e in range(4):
            k.i(f"v_fma_f32 v{X+4*i+e}, v{X+4*i+e}, v{vr3}, v{vt}")
        k.i(f"v_cvt_pk_bf16_f32 v{XR+2*i}, v{X+4*i}, v{X+4*i+1}")
        k.i(f"v_cvt_pk_bf16_f32 v{XR+2*i+1}, v{X+4*i+2}, v{X+4*i+3}")
        k.i(f"ds_write_b64 v13, {vr(XR+2*i,2)} offset:{128*i}")
    if k is not k0:
        k.flush()
        k = k0
    k.i(f"v_mul_u32_u24 v14, {RS}, v15")
    k.i("v_lshl_add_u32 v14, v12, 4, v14")
    k.i(f"v_add_u32 v14, {AT}, v14")
    st(k, "a_ln")
    k.wait(lg=0)
    k.i("s_barrier")
    st(k, "a_bar")
    ACC, AF = 52, 68

    def act_read(reg, rt, ks):
        k.i(f"ds_read_b128 {vr(reg,4)}, v14 offset:{rt*16*RS + ks*64}")
    w2 = small_wload_ops(WS_W2F, two)
    for o in w2[0]:
        k.i(o)

    def refill(ks):
        for o in w2[1 + ks]:
            k.i(o)
    small_gemm(k, two, act_read, ACC, AF, refill if two else None)
    st(k, "a_gemm")
    nt = 2 if two else 1
    xs = [ACC + i for i in range(8 * nt)]
    tm = [16 + i for i in range(8 * nt)]
    k.i("v_add_u32 v13, s10, v15")
    k.i(f"s_movk_i32 s15, {S}")
    k.i("v_cmp_gt_u32 s[64:65], s15, v13")
    k.i("v_add_u32 v13, 16, v13")
    k.i("v_cmp_gt_u32 s[66:67], s15, v13")
    for o in gelu_ops(xs, tm, 11, 62):
        k.i(o)
    k.i("v_and_b32 v13, 1, v12")
    k.i(f"v_mul_u32_u24 v13, {18*1024}, v13")
    k.i("v_lshrrev_b32 v10, 1, v12")
    k.i("v_lshl_add_u32 v13, v10, 8, v13")
    k.i("v_lshl_add_u32 v13, v15, 4, v13")
    for t in range(nt):
        k.i(f"s_add_u32 s20, s14, {4*t}")
        k.i("s_lshr_b32 s21, s20, 1")
        k.i(f"s_mul_i32 s22, s6, {36}")
        k.i("s_add_u32 s21, s21, s22")
        k.i("s_lshl_b32 s21, s21, 10")
        k.i("s_and_b32 s20, s20, 1")
        k.i("s_lshl_b32 s20, s20, 9")
        k.i("s_add_u32 s21, s21, s20")
        k.i(f"s_add_u32 s21, s21, {WS_G}")
        p = 40 + 4*t
        for rt in range(2):
            b_ = 16 + 8*t + 4*rt
            k.i(f"v_cvt_pk_bf16_f32 v{p+2*rt}, v{b_}, v{b_+1}")
            k.i(f"v_cvt_pk_bf16_f32 v{p+2*rt+1}, v{b_+2}, v{b_+3}")
            k.i(f"v_cndmask_b32 v{p+2*rt}, 0, v{p+2*rt}, s[{64+2*rt}:{65+2*rt}]")
            k.i(f"v_cndmask_b32 v{p+2*rt+1}, 0, v{p+2*rt+1}, s[{64+2*rt}:{65+2*rt}]")
        k.i(f"v_permlane16_swap_b32 v{p}, v{p+2}")
        k.i(f"v_permlane16_swap_b32 v{p+1}, v{p+3}")
        k.i(f"buffer_store_dwordx4 {vr(p,4)}, v13, s[44:47], s21 offen{SC}")
    if two:
        check_dbg(k, kf0.DBG_W34, 72, 110)
    signal(k, 31)
    st(k, "a_end")


def stage_b(k, two):
    nt = 2 if two else 1
    k.i(f"s_mul_i32 s28, s5, {CHUNK}")
    k.i(f"s_add_u32 s28, s28, {WS_W3F}")
    k.i("s_lshl_b32 s29, s3, 10")
    k.i("s_add_u32 s29, s29, s28")
    k.i("s_add_u32 s29, s29, 8192")
    k.i("s_lshl_b32 s30, s3, 11")
    k.i("s_add_u32 s28, s28, s30")
    k.i("s_cmp_ge_u32 s3, 4")
    k.i("s_cselect_b32 s30, 4096, 0")
    k.i("s_add_u32 s28, s28, s30")

    def ring(n):
        cb = (n // 2) * SLAB + 1024 * (n % 2)
        if two:
            k.i(f"s_add_u32 s30, s28, {cb}")
        else:
            sl = n % 3
            ca = (n // 3) * SLAB + (1024 * sl if sl < 2 else 0)
            k.i(f"s_add_u32 s30, s{28 if sl < 2 else 29}, {ca}")
            k.i(f"s_add_u32 s37, s28, {cb}")
            k.i("s_cmp_lt_u32 s3, 4")
            k.i("s_cselect_b32 s30, s30, s37")
        k.i(f"buffer_load_dwordx4 {ar(4*n,4)}, v3, s[44:47], s30 offen")

    if not two:
        coop_prefetch(k, WS_W3F, WS_W4F, True, True)
        if os.environ.get("RINGEARLY", "1") == "1":
            for n in range(18):
                ring(n)
    k.i("v_add_u32 v5, s8, v15")
    k.i("v_lshlrev_b32 v7, 4, v5")
    k.i("s_movk_i32 s12, 1152")
    k.i("v_mul_lo_u32 v5, v5, s12")
    k.i("v_lshl_add_u32 v5, v12, 3, v5")
    k.i("s_lshl_b32 s12, s14, 5")
    k.i("v_add_u32 v5, s12, v5")
    k.i("v_lshlrev_b32 v6, 7, v12")
    k.i("v_lshl_add_u32 v6, v15, 3, v6")
    k.i("s_lshl_b32 s12, s14, 9")
    k.i("v_add_u32 v6, s12, v6")
    k.i(f"s_mul_i32 s12, s6, {2*Y2_T}")
    k.i(f"s_add_u32 s13, s12, {Y2_T}")
    k.i("s_add_u32 s22, s12, 2048")
    k.i("s_add_u32 s23, s13, 2048")
    k.i(f"s_movk_i32 s15, {16*1152}")
    XR, YR, STR, GS = 16, 24, 32, 40
    for t in range(nt):
        for rt in range(2):
            k.i(f"buffer_load_dwordx2 {vr(XR+4*t+2*rt,2)}, v5, s[48:51], {'s15' if rt else '0'} offen offset:{128*t}")
            k.i(f"buffer_load_dwordx2 {vr(YR+4*t+2*rt,2)}, v6, s[52:55], s{(22 if t else 12) + rt} offen{SC}")
    k.i(f"s_mul_i32 s20, s6, {36*1024}")
    k.i(f"s_add_u32 s20, s20, {WS_G}")
    k.i("s_lshl_b32 s21, s3, 10")
    k.i("s_add_u32 s20, s20, s21")
    k.i(f"s_add_u32 s21, s21, {GT_OFF}")
    k.i("v_add_u32 v13, s21, v3")
    k.i(f"v_add_u32 v14, {GT_OFF}, v3")
    wait_cnt(k, [31], 4)
    st(k, "b_wait")
    for n in range(4):
        k.i(f"buffer_load_dwordx4 {vr(GS+4*n,4)}, v3, s[44:47], s20 offen{SC}")
        k.i("s_add_u32 s20, s20, 8192")
    k.i("s_sub_u32 s21, s20, 8192")
    k.i("s_cmp_lt_u32 s3, 4")
    k.i("s_cselect_b32 s20, s20, s21")
    k.i(f"buffer_load_dwordx4 {vr(GS+16,4)}, v3, s[44:47], s20 offen{SC}")
    for rt in range(2):
        k.i(f"buffer_load_dwordx4 {vr(STR+4*rt,4)}, v7, s[56:59], 0 offen offset:{256*rt}{SC}")
    if two:
        coop_prefetch(k, WS_W3F, WS_W4F, True, True)
    for n in range(4):
        k.i(f"ds_write_b128 v13, {vr(GS+4*n,4)} offset:{8192*n}")
    k.i("s_cmp_lt_u32 s3, 4")
    k.i("s_cselect_b32 s21, 8192, 0")
    k.i("v_add_u32 v13, s21, v13")
    k.i(f"ds_write_b128 v13, {vr(GS+16,4)} offset:{8192*3}")
    k.wait(lg=0)
    k.i("s_barrier")
    st(k, "b_g")
    ACC, AF = 60, 76

    def act_read(reg, rt, ks):
        k.i(f"ds_read_b128 {vr(reg,4)}, v14 offset:{(rt*18+ks)*1024}")
    RE = os.environ.get("RINGEARLY", "1")

    def refill(ks):
        if two:
            ring(ks)
        if ks == 17:
            for n in range(18, NRING):
                ring(n)
    small_gemm(k, two, act_read, ACC, AF, refill if (RE != "2" and (RE or two)) else None, first=0 if two else 1)
    st(k, "b_gemm")
    k.i("v_and_b32 v13, 1, v12")
    k.i(f"v_mul_u32_u24 v13, {18*1024}, v13")
    k.i("v_lshrrev_b32 v10, 1, v12")
    k.i("v_lshl_add_u32 v13, v10, 8, v13")
    k.i("v_lshl_add_u32 v13, v15, 4, v13")
    k.i("s_lshr_b32 s21, s14, 1")
    k.i(f"s_mul_i32 s22, s6, {36}")
    k.i("s_add_u32 s21, s21, s22")
    k.i("s_lshl_b32 s21, s21, 10")
    k.i("s_and_b32 s20, s14, 1")
    k.i("s_lshl_b32 s20, s20, 9")
    k.i("s_add_u32 s21, s21, s20")
    k.i(f"s_add_u32 s24, s21, {WS_H}")
    k.i(f"s_add_u32 s25, s21, {WS_H + 2048}")
    k.i(f"s_add_u32 s26, s21, {WS_X1}")
    k.i(f"s_add_u32 s27, s21, {WS_X1 + 2048}")
    for rt in range(2):
        st_ = STR + 4*rt
        k.i(f"v_mul_f32 v{st_}, v{st_}, v{st_+1}")
        k.i(f"v_mul_f32 v{st_+2}, v{st_+2}, v{st_+3}")
    for t in range(nt):
        PH, PX = 100 + 0, 104
        if t:
            PH, PX = 40, 44
        for rt in range(2):
            T = 76 + 12 * rt
            st_ = STR + 4*rt
            xr, yr = XR + 4*t + 2*rt, YR + 4*t + 2*rt
            a = ACC + 8*t + 4*rt
            x, y, u = T, T + 4, T + 8
            for h in range(2):
                k.i(f"v_lshlrev_b32 v{x+2*h}, 16, v{xr+h}")
                k.i(f"v_and_b32 v{x+2*h+1}, 0xffff0000, v{xr+h}")
                k.i(f"v_lshlrev_b32 v{y+2*h}, 16, v{yr+h}")
                k.i(f"v_and_b32 v{y+2*h+1}, 0xffff0000, v{yr+h}")
            for e in range(4):
                k.i(f"v_fma_f32 v{u+e}, v{x+e}, v{st_+1}, -v{st_}")
            for e in range(4):
                k.i(f"v_fma_f32 v{x+e}, v{u+e}, v{y+e}, v{x+e}")
            for e in range(4):
                k.i(f"v_fma_f32 v{u+e}, v{x+e}, v{st_+3}, -v{st_+2}")
            for e in range(4):
                k.i(f"v_add_f32 v{u+e}, v{u+e}, v{a+e}")
            k.i(f"v_cvt_pk_bf16_f32 v{PH+2*rt}, v{x}, v{x+1}")
            k.i(f"v_cvt_pk_bf16_f32 v{PH+2*rt+1}, v{x+2}, v{x+3}")
            k.i(f"v_cvt_pk_bf16_f32 v{PX+2*rt}, v{u}, v{u+1}")
            k.i(f"v_cvt_pk_bf16_f32 v{PX+2*rt+1}, v{u+2}, v{u+3}")
        for P in (PX, PH):
            k.i(f"v_permlane16_swap_b32 v{P}, v{P+2}")
            k.i(f"v_permlane16_swap_b32 v{P+1}, v{P+3}")
        k.i(f"buffer_store_dwordx4 {vr(PX,4)}, v13, s[44:47], s{26+t} offen{SC}")
        k.i(f"buffer_store_dwordx4 {vr(PH,4)}, v13, s[44:47], s{24+t} offen{SC}")
        SS = 76 + 4*t
        k.i(f"v_mov_b32 v{SS}, 0")
        k.i(f"v_mov_b32 v{SS+1}, 0")
        for e in range(4):
            k.i(f"v_dot2c_f32_bf16 v{SS}, s63, v{PX+e}")
            k.i(f"v_dot2c_f32_bf16 v{SS+1}, v{PX+e}, v{PX+e}")
        k.i(f"v_mov_b32 v{SS+2}, v{SS}")
        k.i(f"v_mov_b32 v{SS+3}, v{SS+1}")
        k.i(f"v_permlane32_swap_b32 v{SS}, v{SS+2}")
        k.i(f"v_permlane32_swap_b32 v{SS+1}, v{SS+3}")
        k.i(f"v_add_f32 v{SS}, v{SS}, v{SS+2}")
        k.i(f"v_add_f32 v{SS+1}, v{SS+1}, v{SS+3}")
        if t == 0:
            k.i("v_lshrrev_b32 v10, 1, v3")
            k.i("s_mul_i32 s20, s6, 36")
            k.i("s_add_u32 s20, s20, s14")
            k.i("s_lshl_b32 s20, s20, 8")
            k.i(f"s_add_u32 s20, s20, {WS_ST2}")
        k.i("s_mov_b32 exec_hi, 0")
        k.i(f"buffer_store_dwordx2 {vr(SS,2)}, v10, s[44:47], s20 offen offset:{1024*t}{SC}")
        k.i("s_mov_b32 exec_hi, -1")
    st(k, "b_st")
    if RE or two:
        signal(k, 32)
    else:
        for n in range(NRING):
            ring(n)
        signal(k, 32, keep=NRING)
    st(k, "b_end")


def stage_c(k, isA):
    XR = 16
    k.i("s_lshl_b32 s8, s4, 6")
    k.i(f"s_mul_i32 s13, s5, {CHUNK}")
    k.i(f"s_add_u32 s14, s13, {WS_W3F}")
    k.i(f"s_add_u32 s15, s13, {WS_W4F}")
    if isA:
        k.i("s_lshl_b32 s20, s3, 11")
        k.i("v_add_u32 v4, s20, v3")
        k.i("s_lshl_b32 s20, s3, 10")
        k.i("s_add_u32 s21, s20, 8192")
        k.i("v_add_u32 v8, s21, v3")
        k.i("s_add_u32 s21, s20, 16384")
        k.i("v_add_u32 v0, s21, v3")
        k.i("s_lshl_b32 s20, s3, 12")
        k.i("v_add_u32 v2, s20, v3")
    else:
        k.i("s_lshl_b32 s20, s3, 11")
        k.i("s_add_u32 s20, s20, 4096")
        k.i("v_add_u32 v4, s20, v3")
        k.i("s_lshl_b32 s20, s3, 12")
        k.i("s_add_u32 s20, s20, 4096")
        k.i("v_add_u32 v2, s20, v3")
    k.i("s_lshl_b32 s20, s3, 11")
    k.i(f"s_add_u32 s20, s20, {20*1024}")
    k.i("v_add_u32 v13, s20, v3")
    p0 = [(4, 0), (4, 1024)] + ([(8, 0)] if isA else [])
    p1 = [(13, 0), (13, 1024)]
    p2a = [(2, 0), (2, 1024)] + ([(0, 0)] if isA else [])
    p2b = [(2, 2048), (2, 3072)]
    stream = []
    for ks in range(18):
        stream += [(14, ks, v, o) for v, o in p0]
    for ks in range(18):
        stream += [(14, ks, v, o) for v, o in p1]
    for ks in range(10):
        stream += [(15, ks, v, o) for v, o in p2a + p2b]
    SEG4 = os.environ.get("SEG4", "6")
    if SEG4 in "245":
        for ks in range(10, 18):
            stream += [(15, ks, v, o) for v, o in p2a + p2b]
    else:
        for ks in range(10, 18):
            stream += [(15, ks, v, o) for v, o in p2a]
        for ks in range(10, 18):
            stream += [(15, ks, v, o) for v, o in p2b]
    state = {"next": 0, "cur": None}

    def issue_w():
        n = state["next"]
        if n >= len(stream):
            return
        sb, ks, v, o = stream[n]
        if state["cur"] != (sb, ks):
            k.i(f"s_add_u32 s24, s{sb}, {ks*SLAB}")
            state["cur"] = (sb, ks)
        k.i(f"buffer_load_dwordx4 {ar(4*(n % NRING),4)}, v{v}, s[44:47], s24 offen offset:{o}")
        state["next"] = n + 1

    RC = os.environ.get("RINGEARLY", "1") == "2"
    if not RC:
        state["next"] = NRING
        k.vmq = [set(f"a{4*n+e}" for e in range(4)) for n in range(NRING)]
    k.i("s_lshl_b32 s9, s3, 3")
    k.i("v_lshrrev_b32 v5, 7, v3")
    k.i("v_add_u32 v5, s9, v5")
    k.i("v_and_b32 v6, 0x70, v3")
    k.i(f"v_mul_u32_u24 v7, {RS}, v5")
    k.i("v_add_u32 v7, v7, v6")
    k.i("v_and_b32 v5, 15, v5")
    k.i("v_lshlrev_b32 v5, 4, v5")
    k.i("v_lshl_add_u32 v5, v6, 4, v5")
    k.i("s_lshr_b32 s12, s3, 1")
    k.i("s_lshl_b32 s20, s4, 2")
    k.i("s_add_u32 s12, s12, s20")
    k.i(f"s_mul_i32 s12, s12, {18*1024}")
    k.i(f"s_add_u32 s12, s12, {WS_X1}")
    k.i("v_lshrrev_b32 v9, 7, v3")
    k.i("v_add_u32 v9, s9, v9")
    k.i("v_and_b32 v9, 31, v9")
    k.i("v_lshlrev_b32 v9, 3, v9")
    k.i("v_lshl_add_u32 v9, v6, 4, v9")
    k.i("v_cmp_gt_u32 vcc, 64, v6")
    k.i("v_mov_b32 v14, 0x7ff00000")
    k.i("v_cndmask_b32 v14, v14, v9, vcc")
    k.i("s_lshr_b32 s20, s3, 2")
    k.i("s_lshl_b32 s21, s4, 1")
    k.i("s_add_u32 s20, s20, s21")
    k.i(f"s_mul_i32 s20, s20, {36*256}")
    k.i(f"s_add_u32 s20, s20, {WS_ST2}")
    wait_cnt(k, [33], 8)
    st(k, "c_wait")
    XR, SR2, TT = 64, 100, 110
    for i in range(5):
        k.i(f"buffer_load_dwordx2 {vr(SR2+2*i,2)}, v{9 if i < 4 else 14}, s[44:47], s20 offen offset:{2048*(i&1)}{SC}")
        if i & 1:
            k.i("s_add_u32 s20, s20, 4096")
    k.i("v_mov_b32 v125, v5")

    def x1_load(i):
        k.i(f"buffer_load_dwordx4 {vr(XR+4*i,4)}, v125, s[44:47], s12 offen offset:{2048*(i&1)}{SC}")
        if i & 1:
            k.i("s_add_u32 s12, s12, 4096")
    for i in range(3):
        x1_load(i)
    if RC:
        for _ in range(NRING):
            issue_w()
    k.i("v_mov_b32 v1, v7")
    vs, vq, vm, vrs, vt = SR2, SR2 + 1, SR2 + 2, 126, 127

    def norm_ops(i):
        T = TT
        ops = []
        for e in range(4):
            ops.append(f"v_lshlrev_b32 v{T+2*e}, 16, v{XR+4*i+e}")
            ops.append(f"v_and_b32 v{T+2*e+1}, 0xffff0000, v{XR+4*i+e}")
        for e in range(8):
            ops.append(f"v_fma_f32 v{T+e}, v{T+e}, v{vrs}, v{vt}")
        for e in range(4):
            ops.append(f"v_cvt_pk_bf16_f32 v{XR+4*i+e}, v{T+2*e}, v{T+2*e+1}")
        ops.append(f"ds_write_b128 v1, {vr(XR+4*i,4)} offset:{128*i}")
        return ops
    k.i(f"v_mul_u32_u24 v14, {RS}, v15")
    k.i("v_lshl_add_u32 v14, v12, 4, v14")
    k.i(f"v_add_u32 v5, {A_BYTES}, v3")
    k.i(f"v_add_u32 v6, {A_BYTES + 36864}, v3")
    k.i("s_lshl_b32 s20, s3, 12")
    if not isA:
        k.i("s_add_u32 s20, s20, 8192")
    k.i("v_add_u32 v7, s20, v5")
    if isA:
        k.i("s_lshr_b32 s20, s3, 1")
        k.i("s_lshl_b32 s20, s20, 12")
        k.i("s_and_b32 s21, s3, 1")
        k.i("s_lshl_b32 s21, s21, 3")
        k.i("s_add_u32 s20, s20, s21")
        k.i(f"s_add_u32 s20, s20, {4*4096}")
        k.i("v_add_u32 v9, s20, v5")
    k.i("s_lshl_b32 s20, s3, 12")
    k.i(f"s_add_u32 s20, s20, {10*4096}")
    k.i("v_add_u32 v10, s20, v5")
    k.i(f"s_mul_i32 s26, s5, {ACT}")
    k.i(f"s_add_u32 s26, s26, {WS_P}")
    k.i(f"s_mul_i32 s27, s4, {4*18*1024}")
    k.i("s_add_u32 s26, s26, s27")
    if isA:
        k.i("s_lshl_b32 s27, s3, 11")
        k.i("s_add_u32 s28, s26, s27")
        k.i("s_lshr_b32 s27, s3, 1")
        k.i("s_lshl_b32 s27, s27, 10")
        k.i("s_add_u32 s29, s26, s27")
        k.i("s_and_b32 s27, s3, 1")
        k.i("s_lshl_b32 s27, s27, 3")
        k.i("s_add_u32 s29, s29, s27")
        k.i("s_add_u32 s29, s29, 8192")
    else:
        k.i("s_lshl_b32 s27, s3, 11")
        k.i("s_add_u32 s28, s26, s27")
        k.i("s_add_u32 s28, s28, 2048")
    for i in range(1, 5):
        k.i(f"v_add_f32 v{vs}, v{vs}, v{SR2+2*i}")
        k.i(f"v_add_f32 v{vq}, v{vq}, v{SR2+2*i+1}")
    st(k, "c_x1")
    for i in range(3, 6):
        x1_load(i)
    reduce8(k, [vs, vq])
    ln_finish(k, vs, vq, vm, vrs, vt, 61, 60)
    for i in range(3):
        for o in norm_ops(i):
            k.i(o)
    for i in range(6, 9):
        x1_load(i)
    k.wait(lg=0)
    k.i("s_barrier")
    st(k, "c_main")

    ACC0, ACC1, ACC2, AF, TM = 16, 64, 96, 128, 160
    n0 = len(p0)
    wn = {"i": 0}

    def run_seg(ksl, tiles_acc, act_addr, first_zero, filler, per):
        def rd(i, buf):
            for rt in range(4):
                v, o = act_addr(ksl[i], rt)
                yield f"ds_read_b128 {vr(AF+16*buf+4*rt,4)}, v{v} offset:{o}"
        for o in rd(0, 0):
            k.i(o)
        credit = 0.0
        for i, ks in enumerate(ksl):
            nxt = list(rd(i + 1, (i + 1) & 1)) if i + 1 < len(ksl) else []
            for t, ab in enumerate(tiles_acc):
                slot = wn["i"] % NRING
                for rt in range(4):
                    a = vr(ab + 4*rt, 4)
                    c = "0" if (first_zero and i == 0) else a
                    k.i(f"v_mfma_f32_16x16x32_bf16 {a}, {ar(4*slot,4)}, {vr(AF+16*(i&1)+4*rt,4)}, {c}")
                    if nxt and (t > 0 or rt > 0):
                        k.i(nxt.pop(0))
                    credit += per
                    while filler and credit >= 1.0:
                        k.i(filler.pop(0))
                        credit -= 1.0
                wn["i"] += 1
                issue_w()
            for o in nxt:
                k.i(o)
        for o in filler:
            k.i(o)

    def gelu_pack_write(accs, waddr_pair, waddr_single):
        ops = []
        for rt in range(4):
            xs = [accs[0] + 4*rt + e for e in range(4)] + [accs[1] + 4*rt + e for e in range(4)]
            tm = [TM + e for e in range(8)]
            ops += gelu_ops(xs, tm, 11, 62)
            d = accs[0] + 4*rt
            for e in range(4):
                ops.append(f"v_cvt_pk_bf16_f32 v{d+e}, v{TM+2*e}, v{TM+2*e+1}")
            ops.append(f"ds_write_b128 v{waddr_pair}, {vr(d,4)} offset:{rt*1024}")
        if len(accs) > 2:
            for rp in range(2):
                xs = [accs[2] + 8*rp + e for e in range(8)]
                tm = [TM + e for e in range(8)]
                ops += gelu_ops(xs, tm, 11, 62)
                d = accs[2] + 8*rp
                for e in range(4):
                    ops.append(f"v_cvt_pk_bf16_f32 v{d+e}, v{TM+2*e}, v{TM+2*e+1}")
                ops.append(f"ds_write_b64 v{waddr_single}, {vr(d,2)} offset:{(2*rp)*1024}")
                ops.append(f"ds_write_b64 v{waddr_single}, {vr(d+2,2)} offset:{(2*rp+1)*1024}")
        return ops

    def a_addr(ks, rt):
        return (14, rt*16*RS + ks*64)

    def h_addr(ks, rt):
        o = (ks*4 + rt) * 1024
        return (5, o) if o < 36864 else (6, o - 36864)

    def store_ops(accs, sreg_pair, pair_imm, sreg_single):
        ops = []
        for rt in range(4):
            d = TM + 4*(rt & 1)
            for h in range(2):
                a = accs[h] + 4*rt
                ops.append(f"v_cvt_pk_bf16_f32 v{d+2*h}, v{a}, v{a+1}")
                ops.append(f"v_cvt_pk_bf16_f32 v{d+2*h+1}, v{a+2}, v{a+3}")
            ops.append(f"s_add_u32 s30, s{sreg_pair}, {rt*18*1024}")
            ops.append(f"buffer_store_dwordx4 {vr(d,4)}, v3, s[44:47], s30 offen offset:{pair_imm}{SC}")
        if len(accs) > 2:
            for rt in range(4):
                a = accs[2] + 4*rt
                ops.append(f"v_cvt_pk_bf16_f32 v{a}, v{a}, v{a+1}")
                ops.append(f"v_cvt_pk_bf16_f32 v{a+1}, v{a+2}, v{a+3}")
                ops.append(f"s_add_u32 s30, s{sreg_single}, {rt*18*1024}")
                ops.append(f"buffer_store_dwordx2 {vr(a,2)}, v3, s[44:47], s30 offen{SC}")
        return ops

    t0 = [ACC0 + 16*t for t in range(n0)]
    t1 = [ACC1, ACC1 + 16]
    t2a = t0
    t2b = [ACC2, ACC2 + 16]
    if os.environ.get("PRIOB") and not isA:
        k.i("s_setprio 1")
    if os.environ.get("PRIOA") and isA:
        k.i("s_setprio 1")
    for c in range(3):
        f = sum((norm_ops(i) for i in range(3*c + 3, 3*c + 6)), []) if c < 2 else []
        run_seg(list(range(6*c, 6*c + 6)), t0, a_addr, c == 0, f, len(f) / (6*4*n0 - 12.0))
        if c < 2:
            k.wait(lg=0)
            k.i("s_barrier")
    st(k, "c_s1")
    f = gelu_pack_write(t0, 7, 9)
    run_seg(list(range(18)), t1, a_addr, True, f, len(f) / (18*8 - float(os.environ.get("SL2", "24"))))
    k.wait(lg=0)
    k.i("s_barrier")
    st(k, "c_s2")
    f = gelu_pack_write(t1, 10, None)
    run_seg(list(range(10)), t2a + t2b, h_addr, True, f, len(f) / (10*4*(n0+2) - float(os.environ.get("SL3", "40"))))
    k.wait(lg=0)
    k.i("s_barrier")
    st(k, "c_s3")
    if SEG4 == "2":
        run_seg(list(range(10, 18)), t2a + t2b, h_addr, False, [], 0)
        st(k, "c_s4")
        for o in store_ops(t2a, 28, 0, 29) + store_ops(t2b, 28, 1024, None):
            k.i(o)
    elif SEG4 in "45":
        if SEG4 == "5" and not isA:
            k.i("s_setprio 1")
            run_seg(list(range(10, 15)), t2a + t2b, h_addr, False, [], 0)
            k.i("s_setprio 0")
            run_seg(list(range(15, 18)), t2a + t2b, h_addr, False, [], 0)
        else:
            run_seg(list(range(10, 18)), t2a + t2b, h_addr, False, [], 0)
        st(k, "c_s4")
        k.i("s_barrier")
        for o in store_ops(t2a, 28, 0, 29) + store_ops(t2b, 28, 1024, None):
            k.i(o)
    elif SEG4 == "6":
        run_seg(list(range(10, 18)), t2a, h_addr, False, [], 0)
        f = store_ops(t2a[:2], 28, 0, None)
        if isA:
            sa = t2a[2]
            k.i("s_lshr_b32 s20, s3, 1")
            k.i("s_lshl_b32 s20, s20, 12")
            k.i("s_and_b32 s21, s3, 1")
            k.i("s_lshl_b32 s22, s21, 3")
            k.i("s_add_u32 s22, s22, s20")
            k.i("v_add_u32 v9, s22, v3")
            k.i("s_lshl_b32 s22, s21, 11")
            k.i("s_add_u32 s22, s22, s20")
            k.i("v_add_u32 v7, s22, v3")
            for rt in range(4):
                a = sa + 4*rt
                k.i(f"v_cvt_pk_bf16_f32 v{a}, v{a}, v{a+1}")
                k.i(f"v_cvt_pk_bf16_f32 v{a+1}, v{a+2}, v{a+3}")
                k.i(f"ds_write_b64 v9, {vr(a,2)} offset:{1024*rt}")
            k.i(f"s_mul_i32 s22, s21, {2*18*1024 - 8}")
            k.i("s_add_u32 s29, s29, s22")
            k.wait(lg=0)
            for n in range(2):
                f.append(f"ds_read_b128 {vr(sa+4*n,4)}, v7 offset:{1024*n}")
            for n in range(2):
                f.append(f"s_add_u32 s30, s29, {n*18*1024}")
                f.append(f"buffer_store_dwordx4 {vr(sa+4*n,4)}, v3, s[44:47], s30 offen{SC}")
        k.i("s_barrier")
        run_seg(list(range(10, 18)), t2b, h_addr, False, f, len(f) / (8*8 - 16.0))
        st(k, "c_s4")
        for o in store_ops(t2b, 28, 1024, None):
            k.i(o)
    elif SEG4 == "3":
        run_seg(list(range(10, 18)), t2a, h_addr, False, [], 0)
        run_seg(list(range(10, 18)), t2b, h_addr, False, [], 0)
        st(k, "c_s4")
        for o in store_ops(t2a, 28, 0, 29) + store_ops(t2b, 28, 1024, None):
            k.i(o)
    else:
        run_seg(list(range(10, 18)), t2a, h_addr, False, [], 0)
        f = store_ops(t2a, 28, 0, 29)
        run_seg(list(range(10, 18)), t2b, h_addr, False, f, len(f) / (8*8 - 16.0))
        st(k, "c_s4")
        for o in store_ops(t2b, 28, 1024, None):
            k.i(o)
    signal(k, 36)
    st(k, "c_end")


def stage_d(k, name):
    k.i("s_mul_i32 s6, s4, 72")
    k.i("s_mul_i32 s7, s5, 9")
    k.i("s_add_u32 s6, s6, s7")
    k.i("s_add_u32 s6, s6, s3")
    k.i("v_lshrrev_b32 v5, 1, v12")
    k.i("v_lshl_add_u32 v5, v5, 4, v15")
    k.i("v_lshlrev_b32 v5, 4, v5")
    k.i("v_and_b32 v6, 1, v12")
    k.i("v_lshl_add_u32 v5, v6, 3, v5")
    k.i("v_lshrrev_b32 v9, 1, v12")
    k.i("v_lshlrev_b32 v9, 4, v9")
    k.i("v_lshl_add_u32 v9, v6, 5, v9")
    OUTSC = os.environ.get("OUTSC", "")

    def addr(su, vout, sp, B):
        k.i(f"s_mul_hi_u32 s7, s{su}, 0x0e38e38f")
        k.i("s_mul_i32 s8, s7, 18")
        k.i(f"s_sub_u32 s8, s{su}, s8")
        k.i("s_lshl_b32 s9, s7, 4")
        k.i(f"v_add_u32 v{vout}, s9, v15")
        k.i(f"v_mul_u32_u24 v{vout}, 1152, v{vout}")
        k.i(f"v_add_u32 v{vout}, v9, v{vout}")
        k.i("s_lshl_b32 s9, s8, 6")
        k.i(f"v_add_u32 v{vout}, s9, v{vout}")
        k.i(f"s_lshl_b32 s{sp}, s{su}, 10")
        k.i(f"s_add_u32 s9, s{sp}, {WS_H}")
        k.i(f"s_add_u32 s10, s{sp}, {WS_X1}")
        for h in range(2):
            k.i(f"buffer_load_dwordx2 {vr(B+32+2*h,2)}, v5, s[44:47], s9 offen offset:{512*h}{SC}")
            k.i(f"buffer_load_dwordx2 {vr(B+36+2*h,2)}, v5, s[44:47], s10 offen offset:{512*h}{SC}")
        k.i(f"s_add_u32 s{sp}, s{sp}, {WS_P}")

    def loads(sp, B):
        for p in range(8):
            k.i(f"buffer_load_dwordx4 {vr(B+4*p,4)}, v3, s[44:47], s{sp} offen{SC}")
            if p < 7:
                k.i(f"s_add_u32 s{sp}, s{sp}, {ACT}")

    def finish(vout, B):
        A = B + 40
        for n, p in enumerate([8, 9] + list(range(8))):
            src = B + 4*p
            for e in range(4):
                if n == 0:
                    k.i(f"v_lshlrev_b32 v{A+2*e}, 16, v{src+e}")
                    k.i(f"v_and_b32 v{A+2*e+1}, 0xffff0000, v{src+e}")
                else:
                    k.i(f"v_lshlrev_b32 v6, 16, v{src+e}")
                    k.i(f"v_and_b32 v7, 0xffff0000, v{src+e}")
                    k.i(f"v_add_f32 v{A+2*e}, v{A+2*e}, v6")
                    k.i(f"v_add_f32 v{A+2*e+1}, v{A+2*e+1}, v7")
        for e in range(4):
            k.i(f"v_cvt_pk_bf16_f32 v{A+8+e}, v{A+2*e}, v{A+2*e+1}")
        k.i(f"v_permlane16_swap_b32 v{A+8}, v{A+10}")
        k.i(f"v_permlane16_swap_b32 v{A+9}, v{A+11}")
        k.i(f"buffer_store_dwordx4 {vr(A+8,4)}, v{vout}, s[68:71], 0 offen{OUTSC}")
    addr(6, 4, 12, 16)
    k.i("s_cmp_lg_u32 s3, 0")
    k.i(f"s_cbranch_scc1 {name}_d1")
    sv = k.save()
    k.i("s_add_u32 s11, s6, 8")
    addr(11, 8, 13, 72)
    wait_cnt(k, [36], 8)
    st(k, "d_wait")
    loads(12, 16)
    loads(13, 72)
    finish(4, 16)
    finish(8, 72)
    k.i(f"s_branch {name}_ddone")
    k.restore(sv)
    k.label(f"{name}_d1")
    wait_cnt(k, [36], 8)
    st(k, "d_wait")
    loads(12, 16)
    finish(4, 16)
    k.label(f"{name}_ddone")


def kernels():
    import kf0
    return [(NAME + "_kernel", gen_kf(NAME + "_kernel"), 256, 512, max(KM_LDS, kf0.P0_LDS), 256, 96, ACCUM)]
```

```python
import re
import copy

_REG = re.compile(r"(?<![\w.])([vas])(?:(\d+)|\[(\d+):(\d+)\])(?![\w])")


def regs_of(tok):
    out = set()
    for m in _REG.finditer(tok):
        f = m.group(1)
        if m.group(2) is not None:
            out.add(f + m.group(2))
        else:
            for i in range(int(m.group(3)), int(m.group(4)) + 1):
                out.add(f + str(i))
    if re.search(r"\bvcc\b", tok):
        out.add("vcc")
    if re.search(r"\bexec\b", tok):
        out.add("exec")
    if re.search(r"\bm0\b", tok):
        out.add("m0")
    return out


def split_ops(s):
    ops, depth, cur = [], 0, ""
    for ch in s:
        if ch in "[(":
            depth += 1
        if ch in "])":
            depth -= 1
        if ch == "," and depth == 0:
            ops.append(cur.strip())
            cur = ""
        else:
            cur += ch
    if cur.strip():
        ops.append(cur.strip())
    return ops


TRANS = ("v_exp_f32", "v_log_f32", "v_rcp_f32", "v_rsq_f32", "v_sqrt_f32", "v_sin_f32", "v_cos_f32")


def vr(base, n=1):
    return f"v{base}" if n == 1 else f"v[{base}:{base + n - 1}]"


def ar(base, n=1):
    return f"a{base}" if n == 1 else f"a[{base}:{base + n - 1}]"


def sr(base, n=1):
    return f"s{base}" if n == 1 else f"s[{base}:{base + n - 1}]"


class Ins:
    __slots__ = ("text", "op", "dst", "src", "kind", "slots", "srcC", "srcAB", "passes", "dpp", "wide_store")

    def __init__(self, text):
        self.text = text
        self.slots = 1
        self.srcC = set()
        self.srcAB = set()
        self.passes = 0
        self.dpp = False
        self.wide_store = False
        t = text.split(";")[0].strip()
        parts = t.split(None, 1)
        self.op = op = parts[0]
        rest = parts[1] if len(parts) > 1 else ""
        ops = split_ops(rest)
        R = [regs_of(o) for o in ops]
        allr = set().union(*R) if R else set()
        dst, src = set(), set()
        kind = "other"
        if op.startswith("v_mfma"):
            kind = "mfma"
            dst = R[0]
            self.srcAB = R[1] | R[2]
            self.srcC = R[3]
            src = self.srcAB | self.srcC
            self.passes = 8 if "32x32" in op else 4
        elif op.startswith("buffer_load") or op.startswith("global_load"):
            if re.search(r"\blds\b", rest) or "_lds_" in op:
                kind = "vmem_lds"
                src = allr | {"m0"}
            else:
                kind = "vmem_ld"
                dst = R[0]
                src = set().union(*R[1:])
        elif op.startswith("buffer_store") or op.startswith("global_store"):
            kind = "vmem_st"
            src = allr
            self.wide_store = op.endswith("x4") or op.endswith("x3")
        elif "atomic" in op and (op.startswith("buffer") or op.startswith("global")):
            if re.search(r"\bsc0\b", rest):
                kind = "vmem_ld"
                dst = R[0]
                src = allr
            else:
                kind = "vmem_st"
                src = allr
        elif op in ("buffer_inv", "buffer_wbl2"):
            kind = "vmem_st"
        elif op.startswith("ds_read") or op.startswith("ds_bpermute") or op.startswith("ds_swizzle") or op.startswith("ds_permute"):
            kind = "ds_ld"
            dst = R[0]
            src = set().union(*R[1:])
        elif op.startswith("ds_add_rtn"):
            kind = "ds_ld"
            dst = R[0]
            src = set().union(*R[1:])
        elif op.startswith("ds_"):
            kind = "ds_st"
            src = allr
        elif op.startswith("s_load") or op.startswith("s_memtime") or op.startswith("s_memrealtime") or op.startswith("s_buffer_load"):
            kind = "smem"
            dst = R[0]
            src = set().union(*R[1:]) if len(R) > 1 else set()
        elif op == "s_nop":
            kind = "nop"
            self.slots = int(rest, 0) + 1
        elif op.startswith("s_"):
            kind = "salu"
            if op.startswith("s_cmp") or op.startswith("s_cbranch") or op.startswith("s_branch") or op in (
                "s_waitcnt", "s_barrier", "s_endpgm", "s_sleep", "s_setprio", "s_bitcmp1_b32", "s_bitcmp0_b32"):
                src = allr
            else:
                dst = R[0]
                src = set().union(*R[1:]) if len(R) > 1 else set()
                if "saveexec" in op:
                    dst = dst | {"exec"}
                    src = src | {"exec"}
        elif op.startswith("v_"):
            kind = "valu"
            if op.split("_e")[0] in TRANS or op in TRANS:
                kind = "trans"
            self.dpp = "_dpp" in op or "quad_perm" in rest or "row_" in rest or "wave_" in rest
            if op.startswith("v_permlane"):
                dst = R[0] | R[1]
                src = R[0] | R[1]
            elif op.startswith("v_cmpx"):
                dst = R[0] | {"exec"}
                src = set().union(*R[1:])
            elif op.startswith("v_add_co") or op.startswith("v_sub_co") or op.startswith("v_addc_co") or op.startswith("v_subb_co"):
                dst = R[0] | R[1]
                src = set().union(*R[2:])
            else:
                dst = R[0]
                src = set().union(*R[1:]) if len(R) > 1 else set()
                if op.startswith("v_fmac") or op.startswith("v_dot2c") or op.startswith("v_writelane") or self.dpp:
                    src = src | R[0]
        self.kind = kind
        self.dst = dst
        self.src = src


class Kern:
    def __init__(self):
        self.out = []
        self.hist = []
        self.vmq = []
        self.lgq = []
        self.auto = True
        self.ninst = 0

    def save(self):
        return (copy.copy(self.hist), copy.deepcopy(self.vmq), copy.deepcopy(self.lgq))

    def restore(self, st):
        self.hist, self.vmq, self.lgq = copy.copy(st[0]), copy.deepcopy(st[1]), copy.deepcopy(st[2])

    def raw(self, text):
        self.out.append(text)

    def label(self, name):
        self.out.append(f"{name}:")

    def c(self, text):
        self.out.append(f"    ; {text}")

    def _push(self, ins):
        self.out.append("    " + ins.text)
        self.hist.append(ins)
        self.ninst += 1
        if len(self.hist) > 40:
            self.hist = self.hist[-40:]

    def wait(self, vm=None, lg=None):
        parts = []
        if vm is not None:
            vm = min(vm, 63)
            if len(self.vmq) > vm:
                self.vmq = self.vmq[len(self.vmq) - vm:] if vm else []
            parts.append(f"vmcnt({vm})")
        if lg is not None:
            lg = min(lg, 15)
            if len(self.lgq) > lg:
                self.lgq = self.lgq[len(self.lgq) - lg:] if lg else []
            parts.append(f"lgkmcnt({lg})")
        self._push(Ins("s_waitcnt " + " ".join(parts)))

    def _auto_wait(self, ins):
        touched = ins.src | ins.dst
        vm = lg = None
        for i in range(len(self.vmq) - 1, -1, -1):
            if self.vmq[i] & touched:
                vm = len(self.vmq) - 1 - i
                break
        for i in range(len(self.lgq) - 1, -1, -1):
            if self.lgq[i][0] & touched:
                lg = len(self.lgq) - 1 - i
                if any(s for _, s in self.lgq):
                    lg = 0
                break
        if vm is not None or lg is not None:
            self.wait(vm, lg)

    def _need(self, ins):
        need = 0
        dist = 0
        vsrc = {r for r in ins.src if r[0] in "va" and r not in ("vcc",)}
        for p in reversed(self.hist):
            req = 0
            isv = p.kind in ("valu", "trans")
            pv = {r for r in p.dst if r[0] in "va" and r != "vcc"}
            ps = {r for r in p.dst if r[0] == "s" or r == "vcc"}
            if isv:
                if ins.kind == "mfma" and (pv & ins.src):
                    req = max(req, 2)
                if ins.kind in ("valu", "trans"):
                    if ins.dpp and (pv & ins.src):
                        req = max(req, 2)
                    if ins.op.startswith("v_permlane") and (pv & ins.src):
                        req = max(req, 2)
                    if (ins.op.startswith("v_readfirstlane") or ins.op.startswith("v_readlane")) and (pv & ins.src):
                        req = max(req, 1)
                    if ps & ins.src:
                        req = max(req, 4 if (ins.op.startswith("v_readlane") or ins.op.startswith("v_writelane")) else 2)
                    if "exec" in p.dst:
                        req = max(req, 5 if ins.dpp else 4)
                if ins.kind in ("vmem_ld", "vmem_st", "vmem_lds") and (ps & ins.src):
                    req = max(req, 5)
                if ins.kind == "mfma" and "exec" in p.dst:
                    req = max(req, 4)
                if p.op.startswith("v_dot") and ins.op != p.op and (pv & (ins.src | ins.dst)):
                    req = max(req, 3)
                if p.kind == "trans" and ins.kind in ("valu", "mfma") and (pv & ins.src):
                    req = max(req, 1)
                if p.kind == "trans" and ins.kind in ("vmem_st", "ds_st", "vmem_ld", "ds_ld") and (pv & ins.src):
                    req = max(req, 1)
            if p.kind == "mfma":
                big = 8 if p.passes == 4 else 12
                if ins.kind == "mfma":
                    if p.dst & ins.srcAB:
                        req = max(req, big)
                    if p.dst & ins.srcC:
                        if not (p.dst == ins.srcC and p.op == ins.op):
                            req = max(req, big - 2)
                    elif p.dst & ins.dst:
                        req = max(req, big)
                else:
                    if p.dst & (ins.src | ins.dst):
                        req = max(req, big)
                    if ins.kind in ("valu", "trans") and (p.srcC & ins.dst):
                        req = max(req, 3 if p.passes == 4 else 7)
            if p.kind == "salu" and "m0" in p.dst and (ins.kind == "vmem_lds" or "m0" in ins.src):
                req = max(req, 1)
            if p.wide_store and (p.src & ins.dst):
                req = max(req, 2)
            if req > dist:
                need = max(need, req - dist)
            dist += p.slots
            if dist > 24:
                break
        return need

    def i(self, text):
        ins = Ins(text)
        if self.auto:
            self._auto_wait(ins)
        if ins.kind in ("ds_ld", "ds_st", "smem") and len(self.lgq) >= 15:
            self.wait(lg=0 if any(s for _, s in self.lgq) else 14)
        if ins.kind in ("vmem_ld", "vmem_st", "vmem_lds") and len(self.vmq) >= 63:
            self.wait(vm=62)
        n = self._need(ins)
        while n > 0:
            k = min(n, 16)
            self._push(Ins(f"s_nop {k - 1}"))
            n -= k
        self._push(ins)
        if ins.kind in ("vmem_ld", "vmem_st", "vmem_lds"):
            self.vmq.append(set(ins.dst))
        elif ins.kind in ("ds_ld", "ds_st"):
            self.lgq.append((set(ins.dst), False))
        elif ins.kind == "smem":
            self.lgq.append((set(ins.dst), True))
        return ins

    def stamp(self, idx):
        if not getattr(self, "stamps", False):
            return
        import os
        op = "s_memtime" if os.environ.get("CYC") == "1" else "s_memrealtime"
        self.i(f"{op} s[{80+2*idx}:{81+2*idx}]")
        self.nst = max(getattr(self, "nst", 0), idx + 1)

    def stamp_flush(self, kid, wsoff, srd="s[44:47]"):
        if not getattr(self, "stamps", False):
            return
        import os
        if os.environ.get("DBGST"):
            self.wait(lg=0)
            self.i(f"s_cmp_lg_u32 s2, {os.environ['DBGST']}")
            self.i("s_cbranch_scc1 Ldbg_skip")
            self.i("s_cmp_lg_u32 s3, 0")
            self.i("s_cbranch_scc1 Ldbg_skip")
            self.i("s_mov_b64 exec, 1")
            self.i("v_mov_b32 v1, 0")
            for i in range(8):
                self.i(f"s_sub_u32 s78, s{80+2*i}, s80")
                self.i("v_mov_b32 v0, s78")
                self.i(f"global_store_dword v1, v0, s[40:41] offset:{16+4*i}")
            self.label("Ldbg_skip")
            return
        self.wait(lg=0)
        self.i("s_lshl_b32 s78, s2, 3")
        self.i("s_add_u32 s78, s78, s3")
        self.i("s_lshl_b32 s78, s78, 5")
        self.i(f"s_add_u32 s78, s78, {wsoff + kid * 1024 * 8 * 32}")
        self.i("s_mov_b64 exec, 1")
        self.i("v_mov_b32 v1, 0")
        for i in range(8):
            self.i(f"v_mov_b32 v0, s{80+2*i}")
            self.i(f"buffer_store_dword v0, v1, {srd}, s78 offen offset:{4*i}")

    def text(self):
        return "\n".join(self.out)
```

```python
import struct, os
from dsl import *
from common import *
from k2345 import f32, srd, gelu_ops, reduce16_stride4, reduce8, ln_finish, RS, GELU_C0, GELU_C1

A_BYTES = 64 * RS
H_BYTES = 18 * 4 * 1024
KM_LDS = A_BYTES + H_BYTES
ACCUM = 168
NRING = (256 - ACCUM) // 4
GT_OFF = 94208
XL = 94208
YL = 0
AT = 55296
CNT_A = WS_FLAG
CNT_B = WS_FLAG + 64 * 128
CNT_C = WS_FLAG + 96 * 128
SC = " sc1"
POLL_SLEEP = int(os.environ.get("POLL_SLEEP", "4"))
_uid = [0]


STMAP = {
    "": {"start": 0, "a_x": 1, "a_end": 2, "b_wait": 3, "b_end": 4, "c_wait": 5, "c_main": 6, "end": 7},
    "P": {"start": 0, "p_kc": 1, "p_q0": 2, "p_q1": 3, "p_q2": 4, "p_q3": 5, "p_mf": 6, "common": 7,
          "l_q0": 2, "l_q1": 3, "l_q2": 4, "l_q3": 5, "r_iss": 1, "r_ld": 2},
    "F": {"start": 0, "common": 1, "a_yw": 2, "a_end": 3, "b_end": 4, "c_main": 5, "c_end": 6, "end": 7},
    "A2": {"common": 0, "a_w12": 1, "a_yw": 2, "a_y": 3, "a_ln": 4, "a_bar": 5, "a_gemm": 6, "a_end": 7},
    "A": {"start": 0, "a_issued": 1, "a_x": 2, "a_wissued": 3, "a_ln": 4, "a_bar": 5, "a_gemm": 6, "a_end": 7},
    "B": {"a_end": 0, "b_wait": 1, "b_g": 2, "b_gemm": 3, "b_st": 4, "b_end": 5, "c_wait": 6, "c_x1": 7},
    "C": {"c_main": 0, "c_s1": 1, "c_s2": 2, "c_s3": 3, "c_s4": 4, "c_end": 5, "d_wait": 6, "end": 7},
}[os.environ.get("STMAP", "")]


def st(k, nm):
    if nm in STMAP:
        k.stamp(STMAP[nm])


def signal(k, soff_reg, keep=0):
    k.wait(vm=keep, lg=0)
    k.i("s_barrier")
    _uid[0] += 1
    L = f"Lsig{_uid[0]}"
    k.i("s_cmp_lg_u32 s3, 4")
    k.i(f"s_cbranch_scc1 {L}")
    k.raw("    s_mov_b64 exec, 1")
    k.raw("    v_mov_b32 v1, 1")
    k.raw("    v_mov_b32 v10, 0")
    k.raw(f"    buffer_atomic_add v1, v10, s[44:47], s{soff_reg} offen sc1")
    k.raw("    s_mov_b64 exec, -1")
    k.label(L)


def wait_cnt(k, soff_regs, target):
    _uid[0] += 1
    L = f"Lw{_uid[0]}"
    k.i("s_cmp_lg_u32 s3, 4")
    k.i(f"s_cbranch_scc1 {L}_done")
    k.raw("    v_mov_b32 v10, 0")
    k.raw("    s_mov_b32 s35, 0")
    for n, so in enumerate(soff_regs):
        if os.environ.get("PPOLL"):
            k.raw("    s_waitcnt vmcnt(0)")
            k.raw("    v_mov_b32 v1, 0")
            for _ in range(3):
                k.raw(f"    buffer_load_dword v1, v10, s[44:47], s{so} offen sc1")
                k.raw("    s_sleep 3")
            k.label(f"{L}_{n}")
            k.raw(f"    buffer_load_dword v1, v10, s[44:47], s{so} offen sc1")
            k.raw("    s_add_u32 s35, s35, 1")
            k.raw("    s_waitcnt vmcnt(3)")
            k.raw("    v_readfirstlane_b32 s34, v1")
            k.raw("    s_cmp_gt_u32 s35, 0x80000")
            k.raw(f"    s_cbranch_scc1 {L}_done")
            k.raw(f"    s_cmp_lg_u32 s34, {target}")
            k.raw(f"    s_cbranch_scc1 {L}_{n}")
            continue
        k.label(f"{L}_{n}")
        k.raw(f"    buffer_load_dword v1, v10, s[44:47], s{so} offen sc1")
        k.raw("    s_add_u32 s35, s35, 1")
        k.raw("    s_waitcnt vmcnt(0)")
        k.raw("    v_readfirstlane_b32 s34, v1")
        k.raw("    s_cmp_gt_u32 s35, 0x80000")
        k.raw(f"    s_cbranch_scc1 {L}_done")
        k.raw(f"    s_cmp_lg_u32 s34, {target}")
        k.raw(f"    s_cbranch_scc1 {L}_{n}")
    k.label(f"{L}_done")
    k.i("s_barrier")


def poll_dbg(k, off, target, sreg=34, sleep=32):
    _uid[0] += 1
    L = f"Lpd{_uid[0]}"
    k.raw("    v_mov_b32 v10, 0")
    k.raw(f"    s_mov_b32 s{sreg+1}, 0")
    k.label(L)
    k.raw(f"    global_load_dword v1, v10, s[40:41] offset:{off} sc1")
    k.raw(f"    s_add_u32 s{sreg+1}, s{sreg+1}, 1")
    k.raw("    s_waitcnt vmcnt(0)")
    k.raw(f"    v_readfirstlane_b32 s{sreg}, v1")
    k.raw(f"    s_cmp_ge_u32 s{sreg}, {target}")
    k.raw(f"    s_cbranch_scc1 {L}_x")
    k.raw(f"    s_sleep {sleep}")
    k.raw(f"    s_cmp_lt_u32 s{sreg+1}, 0x80000")
    k.raw(f"    s_cbranch_scc1 {L}")
    k.label(f"{L}_x")


def peek_dbg(k, off, vreg):
    k.raw("    v_mov_b32 v10, 0")
    k.raw(f"    global_load_dword v{vreg}, v10, s[40:41] offset:{off} sc1")


def check_dbg(k, off, target, vreg, sleep=8):
    if os.environ.get("NOASYNC"):
        poll_dbg(k, off, target)
        return
    _uid[0] += 1
    L = f"Lck{_uid[0]}"
    k.raw("    s_nop 1")
    k.raw(f"    v_readfirstlane_b32 s34, v{vreg}")
    k.raw(f"    s_cmp_ge_u32 s34, {target}")
    k.raw(f"    s_cbranch_scc1 {L}")
    poll_dbg(k, off, target, sleep=sleep)
    k.label(L)


def wfrag(t, ks):
    if t == 0:
        return ar(4 * ks, 4)
    return ar(72 + 4 * ks, 4) if ks < 4 else vr(112 + 4 * (ks - 4), 4)


def small_wload_ops(wsoff, two, va=3, vb=4, first=0):
    g = [["s_add_u32 s37, s73, s3", "s_lshl_b32 s37, s37, 10", f"s_add_u32 s37, s37, {wsoff}"]]
    for ks in range(18):
        o = [f"buffer_load_dwordx4 {wfrag(first,ks)}, v{va}, s[44:47], s37 offen"]
        if two:
            o.append(f"buffer_load_dwordx4 {wfrag(1,ks)}, v{vb}, s[44:47], s37 offen")
        if ks < 17:
            o.append(f"s_add_u32 s37, s37, {SLAB}")
        g.append(o)
    return g


def small_wloads(k, wsoff, two, va=3, vb=4, first=0):
    for g in small_wload_ops(wsoff, two, va, vb, first):
        for o in g:
            k.i(o)


class Inter:
    def __init__(self, k, groups, every):
        self.k, self.groups, self.every, self.n = k, list(groups), every, 0

    def i(self, text):
        self.k.i(text)
        self.n += 1
        if self.groups and self.n % self.every == 0 and "exec" not in text and not text.startswith("s_cmp"):
            for o in self.groups.pop(0):
                self.k.i(o)

    def flush(self):
        for g in self.groups:
            for o in g:
                self.k.i(o)
        self.groups = []

    def __getattr__(self, a):
        return getattr(self.k, a)


def small_gemm(k, two, act_read, ACC, AF, refill=None, first=0):
    ntile = 2 if two else 1
    NB = 4
    for ks in range(NB - 1):
        for rt in range(2):
            act_read(AF + 8*(ks % NB) + 4*rt, rt, ks)
    for ks in range(18):
        if ks + NB - 1 < 18:
            for rt in range(2):
                act_read(AF + 8*((ks+NB-1) % NB) + 4*rt, rt, ks + NB - 1)
        for t in range(ntile):
            for rt in range(2):
                a = vr(ACC + 8*t + 4*rt, 4)
                k.i(f"v_mfma_f32_16x16x32_bf16 {a}, {wfrag(t+first,ks)}, {vr(AF+8*(ks%NB)+4*rt,4)}, {'0' if ks == 0 else a}")
        if refill:
            refill(ks)


def prefetch_lines(k, base_const, xmul, vdst):
    pass


def coop_prefetch(k, first, second, second_per_x, first_per_x):
    if os.environ.get("NOCOOP"):
        return
    _uid[0] += 1
    L = f"Lpf{_uid[0]}"
    k.i("s_cmp_ge_u32 s3, 6")
    k.i(f"s_cbranch_scc1 {L}")
    k.i("s_cmp_ge_u32 s3, 3")
    k.i(f"s_cselect_b32 s20, {second - first}, 0")
    k.i("s_cselect_b32 s21, 3, 0")
    k.i(f"s_add_u32 s20, s20, {first}")
    k.i("s_sub_u32 s21, s3, s21")
    k.i("s_mul_i32 s21, s21, 54")
    k.i("s_mul_i32 s22, s4, 162")
    k.i("s_add_u32 s21, s21, s22")
    k.i("s_lshl_b32 s21, s21, 7")
    k.i("s_add_u32 s20, s20, s21")
    if first_per_x:
        k.i(f"s_mul_i32 s21, s5, {CHUNK}")
        k.i("s_add_u32 s20, s20, s21")
    k.raw("    v_lshlrev_b32 v1, 7, v2")
    k.raw("    s_mov_b32 exec_hi, 0x3fffff")
    k.raw("    buffer_load_dword v1, v1, s[44:47], s20 offen")
    k.raw("    s_mov_b64 exec, -1")
    k.label(L)


def gen_kf(name):
    import kf0
    k = Kern()
    k.stamps = STAMPS
    k.raw(f".globl {name}\n.p2align 8\n.type {name},@function\n{name}:")
    k.i("s_cmp_ge_u32 s2, 256")
    k.i(f"s_cbranch_scc1 {name}_end")
    st(k, "start")
    k.i("s_load_dwordx16 s[16:31], s[0:1], 0")
    k.i("s_load_dwordx8 s[32:39], s[0:1], 64")
    k.i("s_load_dwordx4 s[40:43], s[0:1], 96")
    k.i("v_lshrrev_b32 v1, 6, v0")
    k.i("v_and_b32 v11, 63, v0")
    k.i("v_readfirstlane_b32 s3, v1")
    k.i("s_lshr_b32 s4, s2, 3")
    k.i("s_and_b32 s5, s2, 7")
    k.i("s_lshl_b32 s74, s5, 3")
    k.i("s_lshr_b32 s75, s4, 2")
    k.i("s_add_u32 s74, s74, s75")
    k.i("s_and_b32 s75, s4, 3")
    k.i("s_lshr_b32 s72, s75, 1")
    k.i("s_add_u32 s72, s72, 1")
    k.i("s_sub_u32 s73, 0, s72")
    k.i("s_bitcmp1_b32 s75, 0")
    k.i("s_cselect_b32 s72, s72, s73")
    k.i("s_lshl_b32 s73, s74, 5")
    k.i("s_add_u32 s72, s72, s73")
    k.i("s_mul_i32 s73, s75, 9")
    k.i("s_getpc_b64 s[6:7]")
    k.label("text_pc0")
    k.i("v_and_b32 v12, 127, v0")
    k.i("s_lshl_b32 s8, s4, 7")
    k.i("v_add_u32 v12, s8, v12")
    k.i("v_lshrrev_b32 v14, 1, v12")
    k.i("v_and_b32 v12, 1, v12")
    k.i("v_add_u32 v12, s5, v12")
    k.i("v_lshlrev_b32 v12, 7, v12")
    k.i("s_movk_i32 s8, 1152")
    k.i("v_mad_u32_u24 v12, v14, s8, v12")
    CPF = os.environ.get("CPF", "1") == "1"
    if CPF:
        k.i("v_lshlrev_b32 v13, 7, v0")
        k.i("s_mov_b32 s8, text_end-text_pc0-4")
        k.i("v_min_u32 v13, s8, v13")
        k.raw("    global_load_dword v167, v13, s[6:7]")
    else:
        k.i("v_lshlrev_b32 v13, 7, v11")
    k.wait(lg=0)
    srd(k, 44, 42, 0, 0x10000000)
    k.i("s_cmp_ge_u32 s3, 4")
    k.i(f"s_cbranch_scc1 {name}_nopf")
    k.i("s_cmp_lt_u32 s3, 2")
    k.i("s_cselect_b64 s[8:9], s[18:19], s[20:21]")
    k.raw("    global_load_dword v166, v12, s[8:9]")
    if not CPF:
        k.raw("    global_load_dword v167, v13, s[6:7]")
    k.label(f"{name}_nopf")
    if os.environ.get("TLBW"):
        k.i("s_cmp_lg_u32 s3, 3")
        k.i(f"s_cbranch_scc1 {name}_notlb")
        k.i("v_lshlrev_b32 v13, 21, v11")
        k.i("v_min_u32 v13, 0x3000000, v13")
        k.raw("    buffer_load_dword v165, v13, s[44:47], 0 offen")
        k.i("v_and_b32 v13, 1, v11")
        k.i("v_lshlrev_b32 v13, 21, v13")
        k.raw("    global_load_dword v164, v13, s[38:39]")
        k.label(f"{name}_notlb")
    k.i("v_mov_b32 v111, 0")
    kf0.phase0(k, name, st, 56)
    st(k, "common")
    k.i("v_and_b32 v2, 63, v0")
    k.i("s_lshl_b32 s6, s5, 3")
    k.i("s_lshr_b32 s7, s4, 2")
    k.i("s_add_u32 s6, s6, s7")
    k.i("s_and_b32 s7, s4, 3")
    k.i("s_lshl_b32 s8, s6, 5")
    k.i("s_lshr_b32 s9, s7, 1")
    k.i("s_add_u32 s9, s9, 1")
    k.i("s_sub_u32 s10, 0, s9")
    k.i("s_bitcmp1_b32 s7, 0")
    k.i("s_cselect_b32 s9, s9, s10")
    k.i("s_add_u32 s10, s8, s9")
    k.i("s_lshl_b32 s11, s3, 2")
    k.i("s_add_u32 s11, s11, s10")
    k.i("v_and_b32 v5, 3, v2")
    k.i("v_lshrrev_b32 v6, 2, v2")
    k.i("v_add_u32 v7, s11, v5")
    k.i("v_lshlrev_b32 v3, 4, v2")
    k.i("v_add_u32 v4, 0x1000, v3")
    k.i("v_and_b32 v15, 15, v2")
    k.i("v_lshrrev_b32 v12, 4, v2")
    k.i("s_lshl_b32 s15, s3, 10")
    srd(k, 48, 16, 0, ACT)
    k.i("s_cmp_lt_u32 s4, 18")
    k.i(f"s_cbranch_scc1 {name}_xdone")
    k.i("s_mul_i32 s13, s10, 1152")
    k.i("s_add_u32 s13, s13, s15")
    k.i("v_add_u32 v8, s13, v3")
    k.i(f"s_add_u32 m0, s15, {XL}")
    for n in range(5):
        if n == 4:
            k.i("s_cmp_lt_u32 s3, 4")
            k.i("s_cselect_b32 s13, 8192, 0")
            k.i("v_add_u32 v8, s13, v8")
            k.i("s_add_u32 m0, m0, s13")
        elif n:
            k.i("v_add_u32 v8, 0x2000, v8")
            k.i("s_add_u32 m0, m0, 8192")
        k.i("buffer_load_dwordx4 v8, s[48:51], 0 offen lds")
    k.label(f"{name}_xdone")
    k.vmq = []
    srd(k, 52, 42, WS_Y2, ACT)
    srd(k, 56, 42, WS_ST, S * 16)
    srd(k, 68, 38, 0, ACT)
    k.i("s_ashr_i32 s12, s10, 4")
    k.i(f"s_mul_i32 s13, s12, {Y2_T}")
    k.i("s_add_u32 s13, s13, s15")
    k.i("v_add_u32 v13, s13, v3")
    k.i("s_lshl_b32 s13, s3, 2")
    k.i("v_add_u32 v8, s13, v5")
    k.i("v_mul_u32_u24 v8, 1152, v8")
    k.i("v_lshl_add_u32 v8, v6, 3, v8")
    k.i(f"v_add_u32 v8, {XL}, v8")
    k.i("v_ashrrev_i32 v9, 4, v7")
    k.i("v_subrev_u32 v9, s12, v9")
    k.i(f"v_mul_u32_u24 v9, {Y2_T}, v9")
    k.i("v_and_b32 v10, 15, v7")
    k.i("v_lshl_add_u32 v9, v10, 3, v9")
    k.i("v_lshl_add_u32 v9, v6, 7, v9")
    k.i("s_mul_i32 s14, s7, 9")
    k.i("s_add_u32 s14, s14, s3")
    k.i(f"s_mov_b32 s60, {f32(1.0/576)}")
    k.i(f"s_mov_b32 s61, {f32(1e-5)}")
    k.i(f"s_mov_b32 s62, {f32(-GELU_C0)}")
    k.i(f"v_mov_b32 v11, {f32(-GELU_C1)}")
    k.i("s_mov_b32 s63, 0x3f803f80")
    k.i("s_lshl_b32 s31, s6, 7")
    k.i(f"s_add_u32 s31, s31, {CNT_A}")
    k.i("s_lshr_b32 s32, s6, 1")
    k.i("s_lshl_b32 s32, s32, 7")
    k.i(f"s_add_u32 s32, s32, {CNT_B}")
    k.i("s_lshl_b32 s33, s4, 7")
    k.i(f"s_add_u32 s36, s33, {CNT_C}")
    k.i(f"s_add_u32 s33, s33, {CNT_B}")
    k.i("s_cmp_lg_u32 s3, 4")
    k.i(f"s_cbranch_scc1 {name}_ab1")
    sv = k.save()
    if os.environ.get("PRIO4"):
        k.i("s_setprio 3")
    stage_a(k, True)
    stage_b(k, True)
    if os.environ.get("PRIO4"):
        k.i("s_setprio 0")
    k.i(f"s_branch {name}_cb")
    k.restore(sv)
    k.label(f"{name}_ab1")
    stage_a(k, False)
    stage_b(k, False)
    k.i("s_cmp_ge_u32 s3, 4")
    k.i(f"s_cbranch_scc1 {name}_cb")
    k.label(f"{name}_ca")
    k.i("s_nop 4")
    sv = k.save()
    stage_c(k, True)
    k.i(f"s_branch {name}_d")
    k.restore(sv)
    k.label(f"{name}_cb")
    k.i("s_nop 4")
    stage_c(k, False)
    k.label(f"{name}_d")
    k.i("s_nop 4")
    stage_d(k, name)
    st(k, "end")
    k.stamp_flush(0, WS_STAMP)
    k.label(f"{name}_end")
    k.i("s_endpgm")
    return k


def sum_sq(k, regs, acc):
    for n, r in enumerate(regs):
        k.i(f"v_add_f32 v{acc[n & 1]}, v{acc[n & 1]}, v{r}")
        k.i(f"v_fmac_f32 v{acc[2 + (n & 1)]}, v{r}, v{r}")


def stage_a(k, two):
    XR, YR = 16, 34
    X, T = 52, 88
    vs, vq, vt, t0, vm1, vr1, vm2, vr2, t1, vm3, vr3, vs2, vq2 = 96, 97, 98, 99, 100, 101, 102, 103, 104, 105, 106, 107, 108
    acc = [vs, vs2, vq, vq2]

    def zero():
        for r in acc:
            k.i(f"v_mov_b32 v{r}, 0")

    def fin(m, r):
        k.i(f"v_add_f32 v{vs}, v{vs}, v{vs2}")
        k.i(f"v_add_f32 v{vq}, v{vq}, v{vq2}")
        reduce16_stride4(k, [vs, vq], [t0, t1])
        ln_finish(k, vs, vq, m, r, vt, 61, 60)
    import kf0
    tag = "t" if two else "o"
    if two:
        check_dbg(k, kf0.DBG_W12, 37, 111, sleep=16)
    k.wait(vm=0)
    k.i("s_barrier")
    W1LATE = os.environ.get("W1LATE", "0") == "1"
    if W1LATE:
        k.i("s_cmp_lt_u32 s4, 18")
        k.i(f"s_cbranch_scc1 La_w1a{tag}")
    small_wloads(k, WS_W1F, two)
    if W1LATE:
        k.label(f"La_w1a{tag}")
        k.vmq = []
    W2E = os.environ.get("W2E", "1") == "1"
    if W2E and not two:
        small_wloads(k, WS_W2F, False, first=1)
    st(k, "a_w12")
    if two:
        import kf0
        k.i("s_sub_u32 s20, s4, 18")
        k.i("s_cmp_ge_u32 s20, 9")
        k.i("s_cbranch_scc1 La_now34")
        kf0.dbg_add(k, kf0.DBG_W34)
        k.vmq = []
        k.label("La_now34")
    for i in range(9):
        k.i(f"ds_read_b64 {vr(XR+2*i,2)}, v8 offset:{128*i}")
    zero()
    for i in range(18):
        k.i(f"v_dot2c_f32_bf16 v{acc[i & 1]}, s63, v{XR+i}")
        k.i(f"v_dot2c_f32_bf16 v{acc[2 + (i & 1)]}, v{XR+i}, v{XR+i}")
        k.i(f"v_lshlrev_b32 v{X+2*i}, 16, v{XR+i}")
        k.i(f"v_and_b32 v{X+2*i+1}, 0xffff0000, v{XR+i}")
    fin(vm1, vr1)
    k.i("s_lshl_b32 s20, s4, 7")
    k.i(f"s_add_u32 s20, s20, {WS_FLAG + 128*128}")
    wait_cnt(k, [20], 1)
    st(k, "a_yw")
    k.i(f"s_add_u32 m0, s15, {YL}")
    for n in range(7):
        if n == 6:
            k.i("s_cmp_lt_u32 s3, 6")
            k.i("s_cselect_b32 s13, 8192, 0")
            k.i("v_add_u32 v13, s13, v13")
            k.i("s_add_u32 m0, m0, s13")
        elif n:
            k.i("v_add_u32 v13, 0x2000, v13")
            k.i("s_add_u32 m0, m0, 8192")
        k.i(f"buffer_load_dwordx4 v13, s[52:55], 0 offen{SC} lds")
    if two:
        peek_dbg(k, kf0.DBG_W34, 110)
    nw2 = 0 if (two or W2E) else 18
    if W1LATE:
        k.i("s_cmp_ge_u32 s4, 18")
        k.i(f"s_cbranch_scc1 La_w1b{tag}")
        small_wloads(k, WS_W1F, two)
        k.label(f"La_w1b{tag}")
    if not two and not W2E:
        small_wloads(k, WS_W2F, False, first=1)
    if W1LATE:
        k.i("s_cmp_ge_u32 s4, 18")
        k.i(f"s_cbranch_scc1 La_w1c{tag}")
        k.raw("    s_waitcnt vmcnt(36)")
        k.i(f"s_branch La_w1d{tag}")
        k.label(f"La_w1c{tag}")
        k.raw(f"    s_waitcnt vmcnt({nw2})")
        k.label(f"La_w1d{tag}")
        k.vmq = k.vmq[-36:]
    else:
        k.wait(vm=nw2)
    k.i("s_barrier")
    st(k, "a_y")
    for i in range(9):
        k.i(f"ds_read_b64 {vr(YR+2*i,2)}, v9 offset:{2048*i}")
    k0 = k
    zero()
    for i in range(9):
        for h in range(2):
            k.i(f"v_lshlrev_b32 v{T+2*h}, 16, v{YR+2*i+h}")
            k.i(f"v_and_b32 v{T+2*h+1}, 0xffff0000, v{YR+2*i+h}")
        for e in range(4):
            k.i(f"v_fma_f32 v{T+4+e}, v{X+4*i+e}, v{vr1}, v{vt}")
        for e in range(4):
            k.i(f"v_fma_f32 v{X+4*i+e}, v{T+4+e}, v{T+e}, v{X+4*i+e}")
        sum_sq(k, [X+4*i+e for e in range(4)], acc)
    fin(vm2, vr2)
    k.i("v_lshlrev_b32 v13, 4, v7")
    k0.i("s_mov_b64 exec, 15")
    k0.i(f"buffer_store_dwordx4 {vr(vm1,4)}, v13, s[56:59], 0 offen{SC}")
    k0.i("s_mov_b64 exec, -1")
    k.i(f"v_mul_f32 v{vm3}, v{vr2}, v{vr2}")
    k.i(f"v_subrev_f32 v{vq}, s61, v{vq}")
    k.i(f"v_mul_f32 v{vm3}, v{vm3}, v{vq}")
    k.i(f"v_add_f32 v{vm3}, s61, v{vm3}")
    k.i(f"v_rsq_f32 v{vr3}, v{vm3}")
    k.i(f"v_mul_f32 v{vt}, v{vt}, v{vr3}")
    k.i(f"v_mul_f32 v{vr3}, v{vr3}, v{vr2}")
    k.i("s_lshl_b32 s15, s3, 2")
    k.i("v_add_u32 v13, s15, v5")
    k.i(f"v_mul_u32_u24 v13, {RS}, v13")
    k.i("v_lshl_add_u32 v13, v6, 3, v13")
    k.i(f"v_add_u32 v13, {AT}, v13")
    for i in range(9):
        for e in range(4):
            k.i(f"v_fma_f32 v{X+4*i+e}, v{X+4*i+e}, v{vr3}, v{vt}")
        k.i(f"v_cvt_pk_bf16_f32 v{XR+2*i}, v{X+4*i}, v{X+4*i+1}")
        k.i(f"v_cvt_pk_bf16_f32 v{XR+2*i+1}, v{X+4*i+2}, v{X+4*i+3}")
        k.i(f"ds_write_b64 v13, {vr(XR+2*i,2)} offset:{128*i}")
    if k is not k0:
        k.flush()
        k = k0
    k.i(f"v_mul_u32_u24 v14, {RS}, v15")
    k.i("v_lshl_add_u32 v14, v12, 4, v14")
    k.i(f"v_add_u32 v14, {AT}, v14")
    st(k, "a_ln")
    k.wait(lg=0)
    k.i("s_barrier")
    st(k, "a_bar")
    ACC, AF = 52, 68

    def act_read(reg, rt, ks):
        k.i(f"ds_read_b128 {vr(reg,4)}, v14 offset:{rt*16*RS + ks*64}")
    w2 = small_wload_ops(WS_W2F, two)
    for o in w2[0]:
        k.i(o)

    def refill(ks):
        for o in w2[1 + ks]:
            k.i(o)
    small_gemm(k, two, act_read, ACC, AF, refill if two else None)
    st(k, "a_gemm")
    nt = 2 if two else 1
    xs = [ACC + i for i in range(8 * nt)]
    tm = [16 + i for i in range(8 * nt)]
    k.i("v_add_u32 v13, s10, v15")
    k.i(f"s_movk_i32 s15, {S}")
    k.i("v_cmp_gt_u32 s[64:65], s15, v13")
    k.i("v_add_u32 v13, 16, v13")
    k.i("v_cmp_gt_u32 s[66:67], s15, v13")
    for o in gelu_ops(xs, tm, 11, 62):
        k.i(o)
    k.i("v_and_b32 v13, 1, v12")
    k.i(f"v_mul_u32_u24 v13, {18*1024}, v13")
    k.i("v_lshrrev_b32 v10, 1, v12")
    k.i("v_lshl_add_u32 v13, v10, 8, v13")
    k.i("v_lshl_add_u32 v13, v15, 4, v13")
    for t in range(nt):
        k.i(f"s_add_u32 s20, s14, {4*t}")
        k.i("s_lshr_b32 s21, s20, 1")
        k.i(f"s_mul_i32 s22, s6, {36}")
        k.i("s_add_u32 s21, s21, s22")
        k.i("s_lshl_b32 s21, s21, 10")
        k.i("s_and_b32 s20, s20, 1")
        k.i("s_lshl_b32 s20, s20, 9")
        k.i("s_add_u32 s21, s21, s20")
        k.i(f"s_add_u32 s21, s21, {WS_G}")
        p = 40 + 4*t
        for rt in range(2):
            b_ = 16 + 8*t + 4*rt
            k.i(f"v_cvt_pk_bf16_f32 v{p+2*rt}, v{b_}, v{b_+1}")
            k.i(f"v_cvt_pk_bf16_f32 v{p+2*rt+1}, v{b_+2}, v{b_+3}")
            k.i(f"v_cndmask_b32 v{p+2*rt}, 0, v{p+2*rt}, s[{64+2*rt}:{65+2*rt}]")
            k.i(f"v_cndmask_b32 v{p+2*rt+1}, 0, v{p+2*rt+1}, s[{64+2*rt}:{65+2*rt}]")
        k.i(f"v_permlane16_swap_b32 v{p}, v{p+2}")
        k.i(f"v_permlane16_swap_b32 v{p+1}, v{p+3}")
        k.i(f"buffer_store_dwordx4 {vr(p,4)}, v13, s[44:47], s21 offen{SC}")
    if two:
        check_dbg(k, kf0.DBG_W34, 72, 110)
    signal(k, 31)
    st(k, "a_end")


def stage_b(k, two):
    nt = 2 if two else 1
    k.i(f"s_mul_i32 s28, s5, {CHUNK}")
    k.i(f"s_add_u32 s28, s28, {WS_W3F}")
    k.i("s_lshl_b32 s29, s3, 10")
    k.i("s_add_u32 s29, s29, s28")
    k.i("s_add_u32 s29, s29, 8192")
    k.i("s_lshl_b32 s30, s3, 11")
    k.i("s_add_u32 s28, s28, s30")
    k.i("s_cmp_ge_u32 s3, 4")
    k.i("s_cselect_b32 s30, 4096, 0")
    k.i("s_add_u32 s28, s28, s30")

    def ring(n):
        cb = (n // 2) * SLAB + 1024 * (n % 2)
        if two:
            k.i(f"s_add_u32 s30, s28, {cb}")
        else:
            sl = n % 3
            ca = (n // 3) * SLAB + (1024 * sl if sl < 2 else 0)
            k.i(f"s_add_u32 s30, s{28 if sl < 2 else 29}, {ca}")
            k.i(f"s_add_u32 s37, s28, {cb}")
            k.i("s_cmp_lt_u32 s3, 4")
            k.i("s_cselect_b32 s30, s30, s37")
        k.i(f"buffer_load_dwordx4 {ar(4*n,4)}, v3, s[44:47], s30 offen")

    if not two:
        coop_prefetch(k, WS_W3F, WS_W4F, True, True)
        if os.environ.get("RINGEARLY", "1") == "1":
            for n in range(18):
                ring(n)
    k.i("v_add_u32 v5, s8, v15")
    k.i("v_lshlrev_b32 v7, 4, v5")
    k.i("s_movk_i32 s12, 1152")
    k.i("v_mul_lo_u32 v5, v5, s12")
    k.i("v_lshl_add_u32 v5, v12, 3, v5")
    k.i("s_lshl_b32 s12, s14, 5")
    k.i("v_add_u32 v5, s12, v5")
    k.i("v_lshlrev_b32 v6, 7, v12")
    k.i("v_lshl_add_u32 v6, v15, 3, v6")
    k.i("s_lshl_b32 s12, s14, 9")
    k.i("v_add_u32 v6, s12, v6")
    k.i(f"s_mul_i32 s12, s6, {2*Y2_T}")
    k.i(f"s_add_u32 s13, s12, {Y2_T}")
    k.i("s_add_u32 s22, s12, 2048")
    k.i("s_add_u32 s23, s13, 2048")
    k.i(f"s_movk_i32 s15, {16*1152}")
    XR, YR, STR, GS = 16, 24, 32, 40
    for t in range(nt):
        for rt in range(2):
            k.i(f"buffer_load_dwordx2 {vr(XR+4*t+2*rt,2)}, v5, s[48:51], {'s15' if rt else '0'} offen offset:{128*t}")
            k.i(f"buffer_load_dwordx2 {vr(YR+4*t+2*rt,2)}, v6, s[52:55], s{(22 if t else 12) + rt} offen{SC}")
    k.i(f"s_mul_i32 s20, s6, {36*1024}")
    k.i(f"s_add_u32 s20, s20, {WS_G}")
    k.i("s_lshl_b32 s21, s3, 10")
    k.i("s_add_u32 s20, s20, s21")
    k.i(f"s_add_u32 s21, s21, {GT_OFF}")
    k.i("v_add_u32 v13, s21, v3")
    k.i(f"v_add_u32 v14, {GT_OFF}, v3")
    wait_cnt(k, [31], 4)
    st(k, "b_wait")
    for n in range(4):
        k.i(f"buffer_load_dwordx4 {vr(GS+4*n,4)}, v3, s[44:47], s20 offen{SC}")
        k.i("s_add_u32 s20, s20, 8192")
    k.i("s_sub_u32 s21, s20, 8192")
    k.i("s_cmp_lt_u32 s3, 4")
    k.i("s_cselect_b32 s20, s20, s21")
    k.i(f"buffer_load_dwordx4 {vr(GS+16,4)}, v3, s[44:47], s20 offen{SC}")
    for rt in range(2):
        k.i(f"buffer_load_dwordx4 {vr(STR+4*rt,4)}, v7, s[56:59], 0 offen offset:{256*rt}{SC}")
    if two:
        coop_prefetch(k, WS_W3F, WS_W4F, True, True)
    for n in range(4):
        k.i(f"ds_write_b128 v13, {vr(GS+4*n,4)} offset:{8192*n}")
    k.i("s_cmp_lt_u32 s3, 4")
    k.i("s_cselect_b32 s21, 8192, 0")
    k.i("v_add_u32 v13, s21, v13")
    k.i(f"ds_write_b128 v13, {vr(GS+16,4)} offset:{8192*3}")
    k.wait(lg=0)
    k.i("s_barrier")
    st(k, "b_g")
    ACC, AF = 60, 76

    def act_read(reg, rt, ks):
        k.i(f"ds_read_b128 {vr(reg,4)}, v14 offset:{(rt*18+ks)*1024}")
    RE = os.environ.get("RINGEARLY", "1")

    def refill(ks):
        if two:
            ring(ks)
        if ks == 17:
            for n in range(18, NRING):
                ring(n)
    small_gemm(k, two, act_read, ACC, AF, refill if (RE != "2" and (RE or two)) else None, first=0 if two else 1)
    st(k, "b_gemm")
    k.i("v_and_b32 v13, 1, v12")
    k.i(f"v_mul_u32_u24 v13, {18*1024}, v13")
    k.i("v_lshrrev_b32 v10, 1, v12")
    k.i("v_lshl_add_u32 v13, v10, 8, v13")
    k.i("v_lshl_add_u32 v13, v15, 4, v13")
    k.i("s_lshr_b32 s21, s14, 1")
    k.i(f"s_mul_i32 s22, s6, {36}")
    k.i("s_add_u32 s21, s21, s22")
    k.i("s_lshl_b32 s21, s21, 10")
    k.i("s_and_b32 s20, s14, 1")
    k.i("s_lshl_b32 s20, s20, 9")
    k.i("s_add_u32 s21, s21, s20")
    k.i(f"s_add_u32 s24, s21, {WS_H}")
    k.i(f"s_add_u32 s25, s21, {WS_H + 2048}")
    k.i(f"s_add_u32 s26, s21, {WS_X1}")
    k.i(f"s_add_u32 s27, s21, {WS_X1 + 2048}")
    for rt in range(2):
        st_ = STR + 4*rt
        k.i(f"v_mul_f32 v{st_}, v{st_}, v{st_+1}")
        k.i(f"v_mul_f32 v{st_+2}, v{st_+2}, v{st_+3}")
    for t in range(nt):
        PH, PX = 100 + 0, 104
        if t:
            PH, PX = 40, 44
        for rt in range(2):
            T = 76 + 12 * rt
            st_ = STR + 4*rt
            xr, yr = XR + 4*t + 2*rt, YR + 4*t + 2*rt
            a = ACC + 8*t + 4*rt
            x, y, u = T, T + 4, T + 8
            for h in range(2):
                k.i(f"v_lshlrev_b32 v{x+2*h}, 16, v{xr+h}")
                k.i(f"v_and_b32 v{x+2*h+1}, 0xffff0000, v{xr+h}")
                k.i(f"v_lshlrev_b32 v{y+2*h}, 16, v{yr+h}")
                k.i(f"v_and_b32 v{y+2*h+1}, 0xffff0000, v{yr+h}")
            for e in range(4):
                k.i(f"v_fma_f32 v{u+e}, v{x+e}, v{st_+1}, -v{st_}")
            for e in range(4):
                k.i(f"v_fma_f32 v{x+e}, v{u+e}, v{y+e}, v{x+e}")
            for e in range(4):
                k.i(f"v_fma_f32 v{u+e}, v{x+e}, v{st_+3}, -v{st_+2}")
            for e in range(4):
                k.i(f"v_add_f32 v{u+e}, v{u+e}, v{a+e}")
            k.i(f"v_cvt_pk_bf16_f32 v{PH+2*rt}, v{x}, v{x+1}")
            k.i(f"v_cvt_pk_bf16_f32 v{PH+2*rt+1}, v{x+2}, v{x+3}")
            k.i(f"v_cvt_pk_bf16_f32 v{PX+2*rt}, v{u}, v{u+1}")
            k.i(f"v_cvt_pk_bf16_f32 v{PX+2*rt+1}, v{u+2}, v{u+3}")
        for P in (PX, PH):
            k.i(f"v_permlane16_swap_b32 v{P}, v{P+2}")
            k.i(f"v_permlane16_swap_b32 v{P+1}, v{P+3}")
        k.i(f"buffer_store_dwordx4 {vr(PX,4)}, v13, s[44:47], s{26+t} offen{SC}")
        k.i(f"buffer_store_dwordx4 {vr(PH,4)}, v13, s[44:47], s{24+t} offen{SC}")
        SS = 76 + 4*t
        k.i(f"v_mov_b32 v{SS}, 0")
        k.i(f"v_mov_b32 v{SS+1}, 0")
        for e in range(4):
            k.i(f"v_dot2c_f32_bf16 v{SS}, s63, v{PX+e}")
            k.i(f"v_dot2c_f32_bf16 v{SS+1}, v{PX+e}, v{PX+e}")
        k.i(f"v_mov_b32 v{SS+2}, v{SS}")
        k.i(f"v_mov_b32 v{SS+3}, v{SS+1}")
        k.i(f"v_permlane32_swap_b32 v{SS}, v{SS+2}")
        k.i(f"v_permlane32_swap_b32 v{SS+1}, v{SS+3}")
        k.i(f"v_add_f32 v{SS}, v{SS}, v{SS+2}")
        k.i(f"v_add_f32 v{SS+1}, v{SS+1}, v{SS+3}")
        if t == 0:
            k.i("v_lshrrev_b32 v10, 1, v3")
            k.i("s_mul_i32 s20, s6, 36")
            k.i("s_add_u32 s20, s20, s14")
            k.i("s_lshl_b32 s20, s20, 8")
            k.i(f"s_add_u32 s20, s20, {WS_ST2}")
        k.i("s_mov_b32 exec_hi, 0")
        k.i(f"buffer_store_dwordx2 {vr(SS,2)}, v10, s[44:47], s20 offen offset:{1024*t}{SC}")
        k.i("s_mov_b32 exec_hi, -1")
    st(k, "b_st")
    if RE or two:
        signal(k, 32)
    else:
        for n in range(NRING):
            ring(n)
        signal(k, 32, keep=NRING)
    st(k, "b_end")


def stage_c(k, isA):
    XR = 16
    k.i("s_lshl_b32 s8, s4, 6")
    k.i(f"s_mul_i32 s13, s5, {CHUNK}")
    k.i(f"s_add_u32 s14, s13, {WS_W3F}")
    k.i(f"s_add_u32 s15, s13, {WS_W4F}")
    if isA:
        k.i("s_lshl_b32 s20, s3, 11")
        k.i("v_add_u32 v4, s20, v3")
        k.i("s_lshl_b32 s20, s3, 10")
        k.i("s_add_u32 s21, s20, 8192")
        k.i("v_add_u32 v8, s21, v3")
        k.i("s_add_u32 s21, s20, 16384")
        k.i("v_add_u32 v0, s21, v3")
        k.i("s_lshl_b32 s20, s3, 12")
        k.i("v_add_u32 v2, s20, v3")
    else:
        k.i("s_lshl_b32 s20, s3, 11")
        k.i("s_add_u32 s20, s20, 4096")
        k.i("v_add_u32 v4, s20, v3")
        k.i("s_lshl_b32 s20, s3, 12")
        k.i("s_add_u32 s20, s20, 4096")
        k.i("v_add_u32 v2, s20, v3")
    k.i("s_lshl_b32 s20, s3, 11")
    k.i(f"s_add_u32 s20, s20, {20*1024}")
    k.i("v_add_u32 v13, s20, v3")
    p0 = [(4, 0), (4, 1024)] + ([(8, 0)] if isA else [])
    p1 = [(13, 0), (13, 1024)]
    p2a = [(2, 0), (2, 1024)] + ([(0, 0)] if isA else [])
    p2b = [(2, 2048), (2, 3072)]
    stream = []
    for ks in range(18):
        stream += [(14, ks, v, o) for v, o in p0]
    for ks in range(18):
        stream += [(14, ks, v, o) for v, o in p1]
    for ks in range(10):
        stream += [(15, ks, v, o) for v, o in p2a + p2b]
    SEG4 = os.environ.get("SEG4", "6")
    if SEG4 in "245":
        for ks in range(10, 18):
            stream += [(15, ks, v, o) for v, o in p2a + p2b]
    else:
        for ks in range(10, 18):
            stream += [(15, ks, v, o) for v, o in p2a]
        for ks in range(10, 18):
            stream += [(15, ks, v, o) for v, o in p2b]
    state = {"next": 0, "cur": None}

    def issue_w():
        n = state["next"]
        if n >= len(stream):
            return
        sb, ks, v, o = stream[n]
        if state["cur"] != (sb, ks):
            k.i(f"s_add_u32 s24, s{sb}, {ks*SLAB}")
            state["cur"] = (sb, ks)
        k.i(f"buffer_load_dwordx4 {ar(4*(n % NRING),4)}, v{v}, s[44:47], s24 offen offset:{o}")
        state["next"] = n + 1

    RC = os.environ.get("RINGEARLY", "1") == "2"
    if not RC:
        state["next"] = NRING
        k.vmq = [set(f"a{4*n+e}" for e in range(4)) for n in range(NRING)]
    k.i("s_lshl_b32 s9, s3, 3")
    k.i("v_lshrrev_b32 v5, 7, v3")
    k.i("v_add_u32 v5, s9, v5")
    k.i("v_and_b32 v6, 0x70, v3")
    k.i(f"v_mul_u32_u24 v7, {RS}, v5")
    k.i("v_add_u32 v7, v7, v6")
    k.i("v_and_b32 v5, 15, v5")
    k.i("v_lshlrev_b32 v5, 4, v5")
    k.i("v_lshl_add_u32 v5, v6, 4, v5")
    k.i("s_lshr_b32 s12, s3, 1")
    k.i("s_lshl_b32 s20, s4, 2")
    k.i("s_add_u32 s12, s12, s20")
    k.i(f"s_mul_i32 s12, s12, {18*1024}")
    k.i(f"s_add_u32 s12, s12, {WS_X1}")
    k.i("v_lshrrev_b32 v9, 7, v3")
    k.i("v_add_u32 v9, s9, v9")
    k.i("v_and_b32 v9, 31, v9")
    k.i("v_lshlrev_b32 v9, 3, v9")
    k.i("v_lshl_add_u32 v9, v6, 4, v9")
    k.i("v_cmp_gt_u32 vcc, 64, v6")
    k.i("v_mov_b32 v14, 0x7ff00000")
    k.i("v_cndmask_b32 v14, v14, v9, vcc")
    k.i("s_lshr_b32 s20, s3, 2")
    k.i("s_lshl_b32 s21, s4, 1")
    k.i("s_add_u32 s20, s20, s21")
    k.i(f"s_mul_i32 s20, s20, {36*256}")
    k.i(f"s_add_u32 s20, s20, {WS_ST2}")
    wait_cnt(k, [33], 8)
    st(k, "c_wait")
    XR, SR2, TT = 64, 100, 110
    for i in range(5):
        k.i(f"buffer_load_dwordx2 {vr(SR2+2*i,2)}, v{9 if i < 4 else 14}, s[44:47], s20 offen offset:{2048*(i&1)}{SC}")
        if i & 1:
            k.i("s_add_u32 s20, s20, 4096")
    k.i("v_mov_b32 v125, v5")

    def x1_load(i):
        k.i(f"buffer_load_dwordx4 {vr(XR+4*i,4)}, v125, s[44:47], s12 offen offset:{2048*(i&1)}{SC}")
        if i & 1:
            k.i("s_add_u32 s12, s12, 4096")
    for i in range(3):
        x1_load(i)
    if RC:
        for _ in range(NRING):
            issue_w()
    k.i("v_mov_b32 v1, v7")
    vs, vq, vm, vrs, vt = SR2, SR2 + 1, SR2 + 2, 126, 127

    def norm_ops(i):
        T = TT
        ops = []
        for e in range(4):
            ops.append(f"v_lshlrev_b32 v{T+2*e}, 16, v{XR+4*i+e}")
            ops.append(f"v_and_b32 v{T+2*e+1}, 0xffff0000, v{XR+4*i+e}")
        for e in range(8):
            ops.append(f"v_fma_f32 v{T+e}, v{T+e}, v{vrs}, v{vt}")
        for e in range(4):
            ops.append(f"v_cvt_pk_bf16_f32 v{XR+4*i+e}, v{T+2*e}, v{T+2*e+1}")
        ops.append(f"ds_write_b128 v1, {vr(XR+4*i,4)} offset:{128*i}")
        return ops
    k.i(f"v_mul_u32_u24 v14, {RS}, v15")
    k.i("v_lshl_add_u32 v14, v12, 4, v14")
    k.i(f"v_add_u32 v5, {A_BYTES}, v3")
    k.i(f"v_add_u32 v6, {A_BYTES + 36864}, v3")
    k.i("s_lshl_b32 s20, s3, 12")
    if not isA:
        k.i("s_add_u32 s20, s20, 8192")
    k.i("v_add_u32 v7, s20, v5")
    if isA:
        k.i("s_lshr_b32 s20, s3, 1")
        k.i("s_lshl_b32 s20, s20, 12")
        k.i("s_and_b32 s21, s3, 1")
        k.i("s_lshl_b32 s21, s21, 3")
        k.i("s_add_u32 s20, s20, s21")
        k.i(f"s_add_u32 s20, s20, {4*4096}")
        k.i("v_add_u32 v9, s20, v5")
    k.i("s_lshl_b32 s20, s3, 12")
    k.i(f"s_add_u32 s20, s20, {10*4096}")
    k.i("v_add_u32 v10, s20, v5")
    k.i(f"s_mul_i32 s26, s5, {ACT}")
    k.i(f"s_add_u32 s26, s26, {WS_P}")
    k.i(f"s_mul_i32 s27, s4, {4*18*1024}")
    k.i("s_add_u32 s26, s26, s27")
    if isA:
        k.i("s_lshl_b32 s27, s3, 11")
        k.i("s_add_u32 s28, s26, s27")
        k.i("s_lshr_b32 s27, s3, 1")
        k.i("s_lshl_b32 s27, s27, 10")
        k.i("s_add_u32 s29, s26, s27")
        k.i("s_and_b32 s27, s3, 1")
        k.i("s_lshl_b32 s27, s27, 3")
        k.i("s_add_u32 s29, s29, s27")
        k.i("s_add_u32 s29, s29, 8192")
    else:
        k.i("s_lshl_b32 s27, s3, 11")
        k.i("s_add_u32 s28, s26, s27")
        k.i("s_add_u32 s28, s28, 2048")
    for i in range(1, 5):
        k.i(f"v_add_f32 v{vs}, v{vs}, v{SR2+2*i}")
        k.i(f"v_add_f32 v{vq}, v{vq}, v{SR2+2*i+1}")
    st(k, "c_x1")
    for i in range(3, 6):
        x1_load(i)
    reduce8(k, [vs, vq])
    ln_finish(k, vs, vq, vm, vrs, vt, 61, 60)
    for i in range(3):
        for o in norm_ops(i):
            k.i(o)
    for i in range(6, 9):
        x1_load(i)
    k.wait(lg=0)
    k.i("s_barrier")
    st(k, "c_main")

    ACC0, ACC1, ACC2, AF, TM = 16, 64, 96, 128, 160
    n0 = len(p0)
    wn = {"i": 0}

    def run_seg(ksl, tiles_acc, act_addr, first_zero, filler, per):
        def rd(i, buf):
            for rt in range(4):
                v, o = act_addr(ksl[i], rt)
                yield f"ds_read_b128 {vr(AF+16*buf+4*rt,4)}, v{v} offset:{o}"
        for o in rd(0, 0):
            k.i(o)
        credit = 0.0
        for i, ks in enumerate(ksl):
            nxt = list(rd(i + 1, (i + 1) & 1)) if i + 1 < len(ksl) else []
            for t, ab in enumerate(tiles_acc):
                slot = wn["i"] % NRING
                for rt in range(4):
                    a = vr(ab + 4*rt, 4)
                    c = "0" if (first_zero and i == 0) else a
                    k.i(f"v_mfma_f32_16x16x32_bf16 {a}, {ar(4*slot,4)}, {vr(AF+16*(i&1)+4*rt,4)}, {c}")
                    if nxt and (t > 0 or rt > 0):
                        k.i(nxt.pop(0))
                    credit += per
                    while filler and credit >= 1.0:
                        k.i(filler.pop(0))
                        credit -= 1.0
                wn["i"] += 1
                issue_w()
            for o in nxt:
                k.i(o)
        for o in filler:
            k.i(o)

    def gelu_pack_write(accs, waddr_pair, waddr_single):
        ops = []
        for rt in range(4):
            xs = [accs[0] + 4*rt + e for e in range(4)] + [accs[1] + 4*rt + e for e in range(4)]
            tm = [TM + e for e in range(8)]
            ops += gelu_ops(xs, tm, 11, 62)
            d = accs[0] + 4*rt
            for e in range(4):
                ops.append(f"v_cvt_pk_bf16_f32 v{d+e}, v{TM+2*e}, v{TM+2*e+1}")
            ops.append(f"ds_write_b128 v{waddr_pair}, {vr(d,4)} offset:{rt*1024}")
        if len(accs) > 2:
            for rp in range(2):
                xs = [accs[2] + 8*rp + e for e in range(8)]
                tm = [TM + e for e in range(8)]
                ops += gelu_ops(xs, tm, 11, 62)
                d = accs[2] + 8*rp
                for e in range(4):
                    ops.append(f"v_cvt_pk_bf16_f32 v{d+e}, v{TM+2*e}, v{TM+2*e+1}")
                ops.append(f"ds_write_b64 v{waddr_single}, {vr(d,2)} offset:{(2*rp)*1024}")
                ops.append(f"ds_write_b64 v{waddr_single}, {vr(d+2,2)} offset:{(2*rp+1)*1024}")
        return ops

    def a_addr(ks, rt):
        return (14, rt*16*RS + ks*64)

    def h_addr(ks, rt):
        o = (ks*4 + rt) * 1024
        return (5, o) if o < 36864 else (6, o - 36864)

    def store_ops(accs, sreg_pair, pair_imm, sreg_single):
        ops = []
        for rt in range(4):
            d = TM + 4*(rt & 1)
            for h in range(2):
                a = accs[h] + 4*rt
                ops.append(f"v_cvt_pk_bf16_f32 v{d+2*h}, v{a}, v{a+1}")
                ops.append(f"v_cvt_pk_bf16_f32 v{d+2*h+1}, v{a+2}, v{a+3}")
            ops.append(f"s_add_u32 s30, s{sreg_pair}, {rt*18*1024}")
            ops.append(f"buffer_store_dwordx4 {vr(d,4)}, v3, s[44:47], s30 offen offset:{pair_imm}{SC}")
        if len(accs) > 2:
            for rt in range(4):
                a = accs[2] + 4*rt
                ops.append(f"v_cvt_pk_bf16_f32 v{a}, v{a}, v{a+1}")
                ops.append(f"v_cvt_pk_bf16_f32 v{a+1}, v{a+2}, v{a+3}")
                ops.append(f"s_add_u32 s30, s{sreg_single}, {rt*18*1024}")
                ops.append(f"buffer_store_dwordx2 {vr(a,2)}, v3, s[44:47], s30 offen{SC}")
        return ops

    t0 = [ACC0 + 16*t for t in range(n0)]
    t1 = [ACC1, ACC1 + 16]
    t2a = t0
    t2b = [ACC2, ACC2 + 16]
    if os.environ.get("PRIOB") and not isA:
        k.i("s_setprio 1")
    if os.environ.get("PRIOA") and isA:
        k.i("s_setprio 1")
    for c in range(3):
        f = sum((norm_ops(i) for i in range(3*c + 3, 3*c + 6)), []) if c < 2 else []
        run_seg(list(range(6*c, 6*c + 6)), t0, a_addr, c == 0, f, len(f) / (6*4*n0 - 12.0))
        if c < 2:
            k.wait(lg=0)
            k.i("s_barrier")
    st(k, "c_s1")
    f = gelu_pack_write(t0, 7, 9)
    run_seg(list(range(18)), t1, a_addr, True, f, len(f) / (18*8 - float(os.environ.get("SL2", "24"))))
    k.wait(lg=0)
    k.i("s_barrier")
    st(k, "c_s2")
    f = gelu_pack_write(t1, 10, None)
    run_seg(list(range(10)), t2a + t2b, h_addr, True, f, len(f) / (10*4*(n0+2) - float(os.environ.get("SL3", "40"))))
    k.wait(lg=0)
    k.i("s_barrier")
    st(k, "c_s3")
    if SEG4 == "2":
        run_seg(list(range(10, 18)), t2a + t2b, h_addr, False, [], 0)
        st(k, "c_s4")
        for o in store_ops(t2a, 28, 0, 29) + store_ops(t2b, 28, 1024, None):
            k.i(o)
    elif SEG4 in "45":
        if SEG4 == "5" and not isA:
            k.i("s_setprio 1")
            run_seg(list(range(10, 15)), t2a + t2b, h_addr, False, [], 0)
            k.i("s_setprio 0")
            run_seg(list(range(15, 18)), t2a + t2b, h_addr, False, [], 0)
        else:
            run_seg(list(range(10, 18)), t2a + t2b, h_addr, False, [], 0)
        st(k, "c_s4")
        k.i("s_barrier")
        for o in store_ops(t2a, 28, 0, 29) + store_ops(t2b, 28, 1024, None):
            k.i(o)
    elif SEG4 == "6":
        run_seg(list(range(10, 18)), t2a, h_addr, False, [], 0)
        f = store_ops(t2a[:2], 28, 0, None)
        if isA:
            sa = t2a[2]
            k.i("s_lshr_b32 s20, s3, 1")
            k.i("s_lshl_b32 s20, s20, 12")
            k.i("s_and_b32 s21, s3, 1")
            k.i("s_lshl_b32 s22, s21, 3")
            k.i("s_add_u32 s22, s22, s20")
            k.i("v_add_u32 v9, s22, v3")
            k.i("s_lshl_b32 s22, s21, 11")
            k.i("s_add_u32 s22, s22, s20")
            k.i("v_add_u32 v7, s22, v3")
            for rt in range(4):
                a = sa + 4*rt
                k.i(f"v_cvt_pk_bf16_f32 v{a}, v{a}, v{a+1}")
                k.i(f"v_cvt_pk_bf16_f32 v{a+1}, v{a+2}, v{a+3}")
                k.i(f"ds_write_b64 v9, {vr(a,2)} offset:{1024*rt}")
            k.i(f"s_mul_i32 s22, s21, {2*18*1024 - 8}")
            k.i("s_add_u32 s29, s29, s22")
            k.wait(lg=0)
            for n in range(2):
                f.append(f"ds_read_b128 {vr(sa+4*n,4)}, v7 offset:{1024*n}")
            for n in range(2):
                f.append(f"s_add_u32 s30, s29, {n*18*1024}")
                f.append(f"buffer_store_dwordx4 {vr(sa+4*n,4)}, v3, s[44:47], s30 offen{SC}")
        k.i("s_barrier")
        run_seg(list(range(10, 18)), t2b, h_addr, False, f, len(f) / (8*8 - 16.0))
        st(k, "c_s4")
        for o in store_ops(t2b, 28, 1024, None):
            k.i(o)
    elif SEG4 == "3":
        run_seg(list(range(10, 18)), t2a, h_addr, False, [], 0)
        run_seg(list(range(10, 18)), t2b, h_addr, False, [], 0)
        st(k, "c_s4")
        for o in store_ops(t2a, 28, 0, 29) + store_ops(t2b, 28, 1024, None):
            k.i(o)
    else:
        run_seg(list(range(10, 18)), t2a, h_addr, False, [], 0)
        f = store_ops(t2a, 28, 0, 29)
        run_seg(list(range(10, 18)), t2b, h_addr, False, f, len(f) / (8*8 - 16.0))
        st(k, "c_s4")
        for o in store_ops(t2b, 28, 1024, None):
            k.i(o)
    signal(k, 36)
    st(k, "c_end")


def stage_d(k, name):
    k.i("s_mul_i32 s6, s4, 72")
    k.i("s_mul_i32 s7, s5, 9")
    k.i("s_add_u32 s6, s6, s7")
    k.i("s_add_u32 s6, s6, s3")
    k.i("v_lshrrev_b32 v5, 1, v12")
    k.i("v_lshl_add_u32 v5, v5, 4, v15")
    k.i("v_lshlrev_b32 v5, 4, v5")
    k.i("v_and_b32 v6, 1, v12")
    k.i("v_lshl_add_u32 v5, v6, 3, v5")
    k.i("v_lshrrev_b32 v9, 1, v12")
    k.i("v_lshlrev_b32 v9, 4, v9")
    k.i("v_lshl_add_u32 v9, v6, 5, v9")
    OUTSC = os.environ.get("OUTSC", "")

    def addr(su, vout, sp, B):
        k.i(f"s_mul_hi_u32 s7, s{su}, 0x0e38e38f")
        k.i("s_mul_i32 s8, s7, 18")
        k.i(f"s_sub_u32 s8, s{su}, s8")
        k.i("s_lshl_b32 s9, s7, 4")
        k.i(f"v_add_u32 v{vout}, s9, v15")
        k.i(f"v_mul_u32_u24 v{vout}, 1152, v{vout}")
        k.i(f"v_add_u32 v{vout}, v9, v{vout}")
        k.i("s_lshl_b32 s9, s8, 6")
        k.i(f"v_add_u32 v{vout}, s9, v{vout}")
        k.i(f"s_lshl_b32 s{sp}, s{su}, 10")
        k.i(f"s_add_u32 s9, s{sp}, {WS_H}")
        k.i(f"s_add_u32 s10, s{sp}, {WS_X1}")
        for h in range(2):
            k.i(f"buffer_load_dwordx2 {vr(B+32+2*h,2)}, v5, s[44:47], s9 offen offset:{512*h}{SC}")
            k.i(f"buffer_load_dwordx2 {vr(B+36+2*h,2)}, v5, s[44:47], s10 offen offset:{512*h}{SC}")
        k.i(f"s_add_u32 s{sp}, s{sp}, {WS_P}")

    def loads(sp, B):
        for p in range(8):
            k.i(f"buffer_load_dwordx4 {vr(B+4*p,4)}, v3, s[44:47], s{sp} offen{SC}")
            if p < 7:
                k.i(f"s_add_u32 s{sp}, s{sp}, {ACT}")

    def finish(vout, B):
        A = B + 40
        for n, p in enumerate([8, 9] + list(range(8))):
            src = B + 4*p
            for e in range(4):
                if n == 0:
                    k.i(f"v_lshlrev_b32 v{A+2*e}, 16, v{src+e}")
                    k.i(f"v_and_b32 v{A+2*e+1}, 0xffff0000, v{src+e}")
                else:
                    k.i(f"v_lshlrev_b32 v6, 16, v{src+e}")
                    k.i(f"v_and_b32 v7, 0xffff0000, v{src+e}")
                    k.i(f"v_add_f32 v{A+2*e}, v{A+2*e}, v6")
                    k.i(f"v_add_f32 v{A+2*e+1}, v{A+2*e+1}, v7")
        for e in range(4):
            k.i(f"v_cvt_pk_bf16_f32 v{A+8+e}, v{A+2*e}, v{A+2*e+1}")
        k.i(f"v_permlane16_swap_b32 v{A+8}, v{A+10}")
        k.i(f"v_permlane16_swap_b32 v{A+9}, v{A+11}")
        k.i(f"buffer_store_dwordx4 {vr(A+8,4)}, v{vout}, s[68:71], 0 offen{OUTSC}")
    addr(6, 4, 12, 16)
    k.i("s_cmp_lg_u32 s3, 0")
    k.i(f"s_cbranch_scc1 {name}_d1")
    sv = k.save()
    k.i("s_add_u32 s11, s6, 8")
    addr(11, 8, 13, 72)
    wait_cnt(k, [36], 8)
    st(k, "d_wait")
    loads(12, 16)
    loads(13, 72)
    finish(4, 16)
    finish(8, 72)
    k.i(f"s_branch {name}_ddone")
    k.restore(sv)
    k.label(f"{name}_d1")
    wait_cnt(k, [36], 8)
    st(k, "d_wait")
    loads(12, 16)
    finish(4, 16)
    k.label(f"{name}_ddone")


def kernels():
    import kf0
    return [(NAME + "_kernel", gen_kf(NAME + "_kernel"), 256, 512, max(KM_LDS, kf0.P0_LDS), 256, 96, ACCUM)]
```
